```python
import torch

def _softmax(x, axis=-1):
    return torch.softmax(x, dim=axis)
def _gelu(x):
    return torch.nn.functional.gelu(x, approximate="tanh")
def _silu(x):
    return torch.nn.functional.silu(x)
def _sigmoid(x):
    return torch.sigmoid(x)
def _layernorm(x, axis=-1, eps=1e-5):
    m = x.mean(dim=axis, keepdim=True)
    v = x.var(dim=axis, keepdim=True, unbiased=False)
    return (x - m) / torch.sqrt(v + eps)
def _scatter_add(tgt, idx, src, axis=0):
    return tgt.clone().index_add_(axis, idx, src)
def _segment_sum(src, seg, n):
    out = torch.zeros((n,) + src.shape[1:], dtype=src.dtype)
    return out.index_add_(0, seg, src)
def _pad(x, pw):
    flat = tuple(v for pair in reversed(pw) for v in pair)
    return torch.nn.functional.pad(x, flat)

kernel_name = 'sequential_preLN__compressed_kv_cla__dense_activation_relu__prompt'

def setup_inputs():

    _w = (lambda a: (lambda t: t.to(torch.bfloat16) if t.is_floating_point() else t)(torch.as_tensor(a)))
    def _A_setup():
        B, H, Sq, Sk, D, M = 1, 32, 2048, 2048, 128, 576
        Dc = 4 * D
        return {
            "x": _w((lambda *s: torch.randn(*s, dtype=torch.bfloat16) * 0.05)(B, Sq, M)),
            "c_kv": _w((lambda *s: torch.randn(*s, dtype=torch.bfloat16) * 0.4)(B, Sk, Dc)),
            "w_q": _w((lambda *s: torch.randn(*s, dtype=torch.bfloat16) * 3.2)(M, H, D) * (M ** -0.5)),
            "w_uk": _w((lambda *s: torch.randn(*s, dtype=torch.bfloat16) * 3.2)(Dc, H, D) * (Dc ** -0.5)),
            "w_uv": _w((lambda *s: torch.randn(*s, dtype=torch.bfloat16) * 0.4)(Dc, H, D) * (Dc ** -0.5)),
            "w_o": _w((lambda *s: torch.randn(*s, dtype=torch.bfloat16) * 0.4)(H, D, M) * ((H * D) ** -0.5)),
        }
    _A_in = _A_setup()

    def _B_setup():
        B, S, D, Dff = 1, 2048, 576, 4608
        return {
            "x": _w((lambda *s: torch.randn(*s, dtype=torch.bfloat16) * 0.05)(B, S, D)),
            "w1": _w((lambda *s: torch.randn(*s, dtype=torch.bfloat16) * 0.05)(D, Dff)),
            "w2": _w((lambda *s: torch.randn(*s, dtype=torch.bfloat16) * 0.05)(Dff, D)),
        }
    _B_in = _B_setup()

    return {
        "A_x": _A_in["x"],
        "A_c_kv": _A_in["c_kv"],
        "A_w_q": _A_in["w_q"],
        "A_w_uk": _A_in["w_uk"],
        "A_w_uv": _A_in["w_uv"],
        "A_w_o": _A_in["w_o"],
        "B_x": _B_in["x"],
        "B_w1": _B_in["w1"],
        "B_w2": _B_in["w2"],
    }

def reference(A_x, A_c_kv, A_w_q, A_w_uk, A_w_uv, A_w_o, B_x, B_w1, B_w2):
    def _A_ref(x, c_kv, w_q, w_uk, w_uv, w_o):
        B, Sq, M = x.shape[0], x.shape[1], x.shape[2]
        Sk = c_kv.shape[1]
        H, D = w_q.shape[1], w_q.shape[2]
        q = torch.einsum("bqm,mhd->bhqd", x, w_q)
        k = torch.einsum("bkc,chd->bhkd", c_kv, w_uk)
        v = torch.einsum("bkc,chd->bhkd", c_kv, w_uv)
        scores = torch.einsum("bhqd,bhkd->bhqk", q, k) * (D ** -0.5)
        off = Sk - Sq
        qi = torch.arange(Sq)[:, None]
        kj = torch.arange(Sk)[None, :]
        cmask = kj <= (qi + off)
        scores = torch.where(cmask[None, None], scores, -1e9)
        p = _softmax(scores, axis=-1)
        ctx = torch.einsum("bhqk,bhkd->bhqd", p, v)
        return torch.einsum("bhqd,hdm->bqm", ctx, w_o)

    def _B_ref(x, w1, w2):
        h = torch.einsum("bsd,df->bsf", x, w1)
        zero = torch.zeros_like(h)
        h = torch.maximum(h, zero)
        return torch.einsum("bsf,fd->bsd", h, w2)

    x = A_x
    h = x + _A_ref(_layernorm(x, axis=-1), A_c_kv, A_w_q, A_w_uk, A_w_uv, A_w_o)
    h2 = h + _B_ref(_layernorm(h, axis=-1), B_w1, B_w2)
    return h2
```

```python
import re

TRANS = ("v_exp_f32", "v_log_f32", "v_rcp_f32", "v_rsq_f32", "v_sqrt_f32", "v_sin_f32", "v_cos_f32",
         "v_rcp_iflag_f32", "v_exp_f16", "v_log_f16", "v_rcp_f16", "v_rsq_f16", "v_sqrt_f16")

def regs_of(tok):
    tok = tok.strip()
    tok = tok.lstrip('-')
    m = re.match(r"^abs\((.*)\)$", tok)
    if m: tok = m.group(1)
    m = re.match(r"^\|(.*)\|$", tok)
    if m: tok = m.group(1)
    m = re.match(r"^([vsa])(\d+)$", tok)
    if m: return {(m.group(1), int(m.group(2)))}
    m = re.match(r"^([vsa])\[(\d+):(\d+)\]$", tok)
    if m: return {(m.group(1), i) for i in range(int(m.group(2)), int(m.group(3)) + 1)}
    if tok == "vcc": return {("s", 106), ("s", 107)}
    if tok == "vcc_lo": return {("s", 106)}
    if tok == "vcc_hi": return {("s", 107)}
    if tok == "exec": return {("x", 0), ("x", 1)}
    if tok == "exec_lo": return {("x", 0)}
    if tok == "exec_hi": return {("x", 1)}
    if tok == "m0": return {("m", 0)}
    return set()

class Ins:
    __slots__ = ("text", "op", "kind", "rd", "wr", "ws", "passes", "srcC", "srcAB", "dpp", "lds", "wide_store",
                 "data", "label", "target", "lanesel", "sconst")
    def __init__(self, text):
        self.text = text
        t = text.split(";")[0].strip()
        self.label = None; self.target = None
        self.kind = None; self.rd = set(); self.wr = set(); self.ws = 1
        self.passes = 0; self.srcC = set(); self.srcAB = set(); self.dpp = False; self.lds = False
        self.wide_store = False; self.data = set(); self.lanesel = set(); self.sconst = set()
        self.op = ""
        if not t or t.startswith("."):
            if t.endswith(":"):
                self.label = t[:-1]; self.kind = "label"
            else:
                self.kind = "dir"
            self.ws = 0
            return
        if t.endswith(":"):
            self.label = t[:-1]; self.kind = "label"; self.ws = 0; return
        parts = t.split(None, 1)
        op = parts[0]; self.op = op
        rest = parts[1] if len(parts) > 1 else ""
        ops = []; cur = ""; depth = 0
        for ch in rest:
            if ch in "[(": depth += 1
            if ch in "])": depth -= 1
            if ch == "," and depth == 0:
                ops.append(cur.strip()); cur = ""
            else: cur += ch
        if cur.strip(): ops.append(cur.strip())
        mods = []
        if ops:
            sp = ops[-1].split()
            ops[-1] = sp[0]; mods = sp[1:]
        base = re.sub(r"_(e32|e64|dpp|sdwa)$", "", op)
        if op == "s_nop":
            self.kind = "nop"; self.ws = int(ops[0], 0) + 1; return
        if op.startswith("v_mfma"):
            self.kind = "mfma"
            self.wr = regs_of(ops[0]); self.srcAB = regs_of(ops[1]) | regs_of(ops[2]); self.srcC = regs_of(ops[3])
            self.rd = self.srcAB | self.srcC
            if "32x32x16" in op: self.passes = 8
            elif "16x16x32" in op: self.passes = 4
            else: raise ValueError("unknown mfma " + op)
            return
        if op.startswith("v_"):
            self.kind = "trans" if base in TRANS else "valu"
            self.dpp = any(m.startswith(("quad_perm", "row_", "wave_")) for m in mods) or op.endswith("_dpp")
            if base.startswith("v_cmp"):
                self.wr = regs_of(ops[0]); srcs = ops[1:]
                if base.startswith("v_cmpx"): self.wr |= regs_of("exec")
            elif base.startswith("v_permlane") and "swap" in base:
                self.wr = regs_of(ops[0]) | regs_of(ops[1]); srcs = ops
            elif base in ("v_add_co_u32", "v_sub_co_u32", "v_subrev_co_u32", "v_addc_co_u32", "v_subb_co_u32", "v_div_scale_f32", "v_mad_u64_u32"):
                self.wr = regs_of(ops[0]) | regs_of(ops[1]); srcs = ops[2:]
            else:
                self.wr = regs_of(ops[0]); srcs = ops[1:]
                if base in ("v_fmac_f32", "v_pk_fmac_f16", "v_dot2c_f32_bf16", "v_writelane_b32") or self.dpp:
                    srcs = ops
                if base == "v_cndmask_b32" and len(ops) == 3: srcs = srcs + ["vcc"]
            for s in srcs: self.rd |= regs_of(s)
            if base in ("v_readlane_b32", "v_writelane_b32"):
                self.lanesel = regs_of(ops[2])
            self.sconst = {r for r in self.rd if r[0] in "sx"}
            return
        if op.startswith(("buffer_", "global_", "flat_")):
            self.kind = "vmem"
            self.lds = ("lds" in mods) or ("_lds_" in op)
            if "load" in op and not self.lds:
                self.wr = regs_of(ops[0]); srcs = ops[1:]
            elif op.startswith("buffer_store") or op.startswith("buffer_atomic"):
                self.data = regs_of(ops[0]); srcs = ops
                if "atomic" in op and "sc0" in mods: self.wr = regs_of(ops[0])
            elif op.startswith("global_store"):
                self.data = regs_of(ops[1]); srcs = ops
            elif op.startswith("global_atomic"):
                if "sc0" in mods:
                    self.wr = regs_of(ops[0]); srcs = ops[1:]; self.data = regs_of(ops[2])
                else:
                    srcs = ops; self.data = regs_of(ops[1])
            else:
                srcs = ops
            for s in srcs: self.rd |= regs_of(s)
            if self.lds: self.rd |= {("m", 0)}
            self.wide_store = ("store" in op) and (op.endswith("x3") or op.endswith("x4"))
            return
        if op.startswith("ds_"):
            self.kind = "ds"
            if op.startswith(("ds_read", "ds_bpermute", "ds_permute", "ds_swizzle")):
                self.wr = regs_of(ops[0]); srcs = ops[1:]
            else:
                srcs = ops
            for s in srcs: self.rd |= regs_of(s)
            return
        if op.startswith("s_"):
            self.kind = "salu"
            if op.startswith(("s_cbranch", "s_branch")):
                self.target = ops[0]; self.kind = "branch"; return
            if op in ("s_waitcnt", "s_barrier", "s_endpgm", "s_setprio", "s_sleep"): return
            if op.startswith("s_cmp") or op.startswith("s_bitcmp"):
                for s in ops: self.rd |= regs_of(s)
                return
            if ops:
                self.wr = regs_of(ops[0])
                for s in ops[1:]: self.rd |= regs_of(s)
                if "saveexec" in op: self.wr |= regs_of("exec"); self.rd |= regs_of("exec")
            return
        raise ValueError("cannot parse: " + text)

def need(p, c):
    n = 0
    pv = p.kind in ("valu", "trans")
    cv = c.kind in ("valu", "trans")
    if pv:
        vw = {r for r in p.wr if r[0] in "va"}
        sw = {r for r in p.wr if r[0] == "s"}
        xw = {r for r in p.wr if r[0] == "x"}
        if c.kind == "mfma" and vw & c.rd: n = max(n, 2)
        if c.kind == "mfma" and xw: n = max(n, 4)
        if p.kind == "trans" and c.kind == "valu" and vw & c.rd: n = max(n, 1)
        if p.kind == "trans" and c.kind in ("vmem", "ds") and vw & c.rd: n = max(n, 1)
        if c.kind == "vmem" and sw & c.rd: n = max(n, 5)
        if cv and sw & c.sconst: n = max(n, 2)
        if cv and sw & c.lanesel: n = max(n, 4)
        if cv and c.dpp and vw & c.rd: n = max(n, 2)
        if cv and c.dpp and xw: n = max(n, 5)
        if cv and c.op.startswith("v_permlane") and vw & c.rd: n = max(n, 2)
        if cv and c.op.startswith(("v_readlane", "v_readfirstlane")) and vw & c.rd: n = max(n, 1)
        if cv and xw and c.op.startswith(("v_readlane", "v_readfirstlane", "v_writelane", "v_permlane")): n = max(n, 4)
        if c.kind in ("salu", "branch") and sw & c.rd: n = max(n, 1)
        if c.kind == "branch" and c.op in ("s_cbranch_vccz", "s_cbranch_vccnz") and sw & {("s",106),("s",107)}: n = max(n, 5)
    if p.kind == "mfma":
        big = {4: 8, 8: 12}[p.passes]; ov = {4: 6, 8: 10}[p.passes]; war = {4: 3, 8: 7}[p.passes]
        if c.kind == "mfma":
            if p.wr & c.srcAB: n = max(n, big)
            if p.wr & c.srcC:
                if not (p.wr == c.srcC and p.passes == c.passes): n = max(n, ov)
            elif p.wr & c.wr:
                n = max(n, big)
        elif cv:
            if p.wr & (c.rd | c.wr): n = max(n, big)
            if p.srcC & c.wr: n = max(n, war)
        elif c.kind in ("vmem", "ds"):
            if p.wr & (c.rd | c.wr): n = max(n, big)
            if p.srcC & c.wr: n = max(n, war)
    if p.kind == "salu" and ("m", 0) in p.wr:
        if (c.kind == "vmem" and c.lds) or (c.kind in ("valu",) and ("m", 0) in c.rd): n = max(n, 1)
    if p.kind == "salu" and cv and c.lanesel & p.wr: n = max(n, 1)
    if p.kind == "vmem" and p.wide_store:
        if cv and p.data & c.wr: n = max(n, 2)
        elif p.data & c.wr: n = max(n, 1)
    if p.kind == "ds" and p.op in ("ds_write_b128", "ds_write_b96"):
        pass
    return n

WINDOW = 24

def fix_hazards(lines, verbose=False):
    ins = [Ins(l) for l in lines]
    out = []
    ninserted = 0
    def req_for(c, hist):
        dist = 0; r = 0
        for p in reversed(hist):
            if p.kind in ("label", "dir"): continue
            nn = need(p, c)
            if nn > dist: r = max(r, nn - dist)
            dist += p.ws
            if dist >= WINDOW: break
            if p.op in ("s_branch", "s_endpgm"): break
        return r
    for c in ins:
        if c.kind not in ("label", "dir"):
            r = req_for(c, out[-3 * WINDOW:])
            while r > 0:
                k = min(r, 16)
                out.append(Ins(f"    s_nop {k-1}   ; auto")); r -= k; ninserted += 1
        out.append(c)
    changed = True
    while changed:
        changed = False
        labels = {x.label: i for i, x in enumerate(out) if x.kind == "label"}
        for i, b in enumerate(out):
            if b.kind == "branch":
                t = labels[b.target]
                hist = [x for x in out[max(0, i - 3 * WINDOW):i]]
                for k in range(len(hist) - 1, -1, -1):
                    if hist[k].op in ("s_branch", "s_endpgm"):
                        hist = hist[k + 1:]; break
                fake = Ins("    s_nop 0")
                hist = hist + [fake]
                worst = 0
                seq = []
                d = 0
                for c in out[t:t + 3 * WINDOW]:
                    if c.kind in ("label", "dir"): continue
                    r = req_for(c, hist + seq)
                    r2 = req_for(c, seq)
                    if r > r2: worst = max(worst, r)
                    seq.append(c); d += c.ws
                    if d >= WINDOW or c.op in ("s_branch", "s_endpgm"): break
                if worst > 0:
                    k = min(worst, 16)
                    out.insert(i, Ins(f"    s_nop {k-1}   ; auto(branch)")); ninserted += 1
                    changed = True
                    break
    if verbose: print("hazard nops inserted:", ninserted)
    return [x.text for x in out]

class K:
    def __init__(self, name):
        self.name = name; self.L = []; self.uid = 0
    def __call__(self, s):
        for l in s.split("\n"):
            l = l.strip()
            if not l: continue
            self.L.append(l if l.endswith(":") else "    " + l)
    def label(self, n): self.L.append(f"{n}:")
    def newlabel(self, p="L"):
        self.uid += 1; return f"{p}_{self.name}_{self.uid}"
    def text(self, verbose=False):
        body = fix_hazards(self.L, verbose)
        n = self.name
        return f".globl {n}\n.p2align 8\n.type {n},@function\n{n}:\n" + "\n".join(body) + "\n"
    def desc(self, vgpr, sgpr=102, accum=None):
        if accum is None: accum = (vgpr + 3) // 4 * 4
        return f""".p2align 6
.amdhsa_kernel {self.name}
  .amdhsa_next_free_vgpr {vgpr}
  .amdhsa_next_free_sgpr {sgpr}
  .amdhsa_accum_offset {accum}
  .amdhsa_group_segment_fixed_size 0
  .amdhsa_kernarg_size 96
  .amdhsa_user_sgpr_count 2
  .amdhsa_user_sgpr_kernarg_segment_ptr 1
  .amdhsa_system_sgpr_workgroup_id_x 1
  .amdhsa_float_denorm_mode_32 3
  .amdhsa_float_denorm_mode_16_64 3
.end_amdhsa_kernel
"""

def v(i, n=1): return f"v{i}" if n == 1 else f"v[{i}:{i+n-1}]"
def a(i, n=1): return f"a{i}" if n == 1 else f"a[{i}:{i+n-1}]"
def s(i, n=1): return f"s{i}" if n == 1 else f"s[{i}:{i+n-1}]"

def build_file(header_comments, launches, kernels):
    out = list(header_comments)
    for n, g, b, l in launches:
        out.append(f"; @launch kernel={n} grid=({g},1,1) block=({b},1,1) lds={l}")
    out.append('.amdgcn_target "amdgcn-amd-amdhsa--gfx950"')
    out.append(".text")
    for k, vg, sg, ac in kernels: out.append(k.text(verbose=True))
    out.append('.section .rodata,"a"')
    for k, vg, sg, ac in kernels: out.append(k.desc(vg, sg, ac))
    return "\n".join(out) + "\n"
```

```python
from asmlib import *

WS_XN  = 0x0000000
WS_KF  = 0x1000000
WS_VF  = 0x2000000
WS_CTX = 0x3000000
WS_P1  = 0x4000000
WS_H   = 0x5400000
WS_HN  = 0x5800000
WS_H1  = 0x6000000
WS_P2  = 0x7400000
WS_SIZE = 0x10000000

import struct, math
KSCALE = 128 ** -0.5 * math.log2(math.e)
KSCALE_HEX = hex(struct.unpack("<I", struct.pack("<f", KSCALE))[0])
MFMA = "v_mfma_f32_16x16x32_bf16"

class Q:
    def __init__(self, k, name, maxv):
        self.k = k; self.name = name; self.q = []; self.maxv = maxv
    def issue(self, tag): self.q.append(tag)
    def need(self, tag):
        idx = [i for i, t in enumerate(self.q) if t == tag]
        if not idx: return None
        n = len(self.q) - 1 - idx[-1]
        self.q = self.q[idx[-1] + 1:]
        return min(n, self.maxv)
    def wait(self, tag):
        n = self.need(tag)
        if n is not None: self.k(f"s_waitcnt {self.name}({n})")
    def wait_str(self, tag):
        n = self.need(tag)
        return None if n is None else f"s_waitcnt {self.name}({n})"
    def drain(self):
        self.q = []; self.k(f"s_waitcnt {self.name}(0)")

def srd(k, base, lo, hi, size):
    k(f"s_mov_b32 s{base}, {lo}\ns_mov_b32 s{base+1}, {hi}\ns_mov_b32 s{base+2}, {size}\ns_mov_b32 s{base+3}, 0x20000")

def srd_off(k, base, lo, hi, off, size):
    k(f"s_add_u32 s{base}, {lo}, {off}\ns_addc_u32 s{base+1}, {hi}, 0\ns_mov_b32 s{base+2}, {size}\ns_mov_b32 s{base+3}, 0x20000")

def red16(k, x, t=None, op="v_add_f32"):
    for r in (8, 4, 2, 1):
        k(f"{op}_dpp v{x}, v{x}, v{x} row_ror:{r} row_mask:0xf bank_mask:0xf")

def red_swap(k, x, t, which, op="v_add_f32"):
    k(f"v_mov_b32 v{t}, v{x}")
    k(f"v_permlane{which}_swap_b32 v{x}, v{t}")
    k(f"{op} v{x}, v{x}, v{t}")

def rbf(k, d, sreg):
    k(f"v_cvt_pk_bf16_f32 v{d}, v{sreg}, v{sreg}")
    k(f"v_lshlrev_b32 v{d}, 16, v{d}")

def ln_core(k, F, n, T, reduce_fn, active=None):
    s1, m, s2, t0, t1 = T[:5]
    k(f"v_add_f32 v{s1}, v{F[0]}, v{F[1]}")
    k(f"v_add_f32 v{s2}, v{F[2]}, v{F[3]}")
    for i in range(4, len(F), 2):
        k(f"v_add_f32 v{s1}, v{s1}, v{F[i]}")
        k(f"v_add_f32 v{s2}, v{s2}, v{F[i+1]}")
    k(f"v_add_f32 v{s1}, v{s1}, v{s2}")
    reduce_fn(s1, t0)
    k(f"v_mul_f32 v{s1}, {1.0/n!r}, v{s1}")
    rbf(k, m, s1)
    k(f"v_sub_f32 v{s1}, v{s1}, v{m}")
    if active: k(f"v_cndmask_b32 v{m}, 0, v{m}, {active}")
    for f in F: k(f"v_sub_f32 v{f}, v{f}, v{m}")
    k(f"v_mul_f32 v{s2}, v{F[0]}, v{F[0]}")
    k(f"v_mul_f32 v{t1}, v{F[1]}, v{F[1]}")
    for i in range(2, len(F), 2):
        k(f"v_fmac_f32 v{s2}, v{F[i]}, v{F[i]}")
        k(f"v_fmac_f32 v{t1}, v{F[i+1]}, v{F[i+1]}")
    k(f"v_add_f32 v{s2}, v{s2}, v{t1}")
    reduce_fn(s2, t0)
    k(f"v_mul_f32 v{s1}, v{s1}, v{s1}")
    k(f"v_mov_b32 v{t1}, {1.0/n!r}")
    k(f"v_fma_f32 v{s2}, v{s2}, v{t1}, -v{s1}")
    k(f"v_max_f32 v{s2}, 0, v{s2}")
    rbf(k, s2, s2)
    k(f"v_add_f32 v{s2}, 0x3727c5ac, v{s2}")
    rbf(k, s2, s2)
    k(f"v_sqrt_f32 v{s2}, v{s2}")
    rbf(k, s2, s2)
    k(f"v_rcp_f32 v{s2}, v{s2}")
    for i in range(0, len(F), 2):
        k(f"v_cvt_pk_bf16_f32 v{F[i+1]}, v{F[i]}, v{F[i+1]}")
    for i in range(0, len(F), 2):
        k(f"v_lshlrev_b32 v{F[i]}, 16, v{F[i+1]}")
        k(f"v_and_b32 v{F[i+1]}, 0xffff0000, v{F[i+1]}")
    for f in F: k(f"v_mul_f32 v{f}, v{f}, v{s2}")
    for i in range(0, len(F), 2):
        k(f"v_cvt_pk_bf16_f32 v{F[i//2]}, v{F[i]}, v{F[i+1]}")

class Stream:
    def __init__(self):
        self.m = []
    def add(self, mfma, pre=None):
        self.m.append(dict(pre=list(pre or []), mfma=mfma, post=[])); return len(self.m) - 1
    def post(self, idx, text): self.m[idx]['post'].append(text)
    def pre(self, idx, text): self.m[idx]['pre'].append(text)

class Em:
    def __init__(self, k):
        self.k = k
        self.vm = Q(k, "vmcnt", 63); self.ds = Q(k, "lgkmcnt", 15)
    def op(self, o):
        if isinstance(o, str): self.k(o); return
        kind = o[0]
        if kind == 'vm': self.k(o[2]); self.vm.issue(o[1])
        elif kind == 'ds': self.k(o[2]); self.ds.issue(o[1])
        elif kind == 'wvm': self.vm.wait(o[1])
        elif kind == 'wds': self.ds.wait(o[1])
        elif kind == 'wboth':
            a = self.vm.need(o[1]); b = self.ds.need(o[2])
            parts = []
            if a is not None: parts.append(f"vmcnt({a})")
            if b is not None: parts.append(f"lgkmcnt({b})")
            if parts: self.k("s_waitcnt " + " ".join(parts))
        else: raise ValueError(o)
    def ops(self, l):
        for o in l: self.op(o)
    def stream(self, st):
        for e in st.m:
            self.ops(e['pre']); self.k(e['mfma']); self.ops(e['post'])

def place(st, start, ops, per=1, step=1, cap=2):
    i = start
    for o in ops:
        while i < len(st.m) - 1 and len(st.m[i]['post']) + (len(o) if isinstance(o, list) else 1) > cap: i += 1
        i = min(i, len(st.m) - 1)
        if isinstance(o, list):
            for x in o: st.post(i, x)
        else: st.post(i, o)
        i += step
    return i

WS_DBG = 0xF000000
class Stamps:
    def __init__(self, k, on, slot=0):
        self.k = k; self.on = on; self.n = 0; self.slot = slot
    def init(self):
        if self.on:
            for i in range(64, 100): self.k(f"s_mov_b32 s{i}, 0")
    def stamp(self, e=None):
        if not self.on: return []
        i = self.n; self.n += 1
        assert i < 8
        return [f"s_waitcnt lgkmcnt(0)", f"s_memrealtime s[{64+4*i}:{65+4*i}]", f"s_memtime s[{66+4*i}:{67+4*i}]", "s_waitcnt lgkmcnt(0)"]
    def dump(self, srd_ws, wave_sgpr, nwaves=4, tmpv=1):
        if not self.on: return
        k = self.k
        k("s_waitcnt vmcnt(0) lgkmcnt(0)")
        k("s_memrealtime s[96:97]\ns_memtime s[98:99]\ns_waitcnt lgkmcnt(0)")
        k(f"s_mul_i32 s100, s2, {nwaves}\ns_add_u32 s100, s100, s{wave_sgpr}\ns_lshl_b32 s100, s100, 7\ns_add_u32 s100, s100, {WS_DBG + self.slot * 0x100000}")
        k(f"v_mov_b32 v{tmpv}, 0")
        for i in range(18):
            k(f"v_mov_b32 v{tmpv+1}, s{64+2*i}")
            k(f"buffer_store_dword v{tmpv+1}, v{tmpv}, s[{srd_ws}:{srd_ws+3}], s100 offen offset:{4*i}")

class Cap:
    def __init__(self): self.L = []
    def __call__(self, s):
        for l in s.split("\n"):
            l = l.strip()
            if l: self.L.append(l)

def otext(o): return o if isinstance(o, str) else (o[2] if o[0] in ('vm', 'ds') else "s_waitcnt")
def otype(o):
    t = otext(o).strip(); op = t.split()[0]
    if op == "s_barrier": return 'b'
    if op.startswith("s_"): return 's'
    if op.startswith("v_mfma"): return 'M'
    if op.startswith(("v_pk_add_f32", "v_pk_mul_f32", "v_pk_fma_f32", "v_pk_mov", "v_dot2")): return 'p'
    if op.replace("_e32", "").replace("_e64", "") in TRANS: return 'e'
    if op.startswith("v_"): return 'x'
    if op.startswith("ds_write"): return 'w'
    if op.startswith("ds_"): return 'd'
    if op.startswith("buffer_store"): return 'S'
    if op.startswith("buffer_"): return 'v'
    raise ValueError(t)
def gapcost(seq, mlen=16):
    t = 4; prev = None; base = 0; free = mlen
    for o in seq:
        c = otype(o); pv = prev in ('x', 'e', 'p')
        lo = base + 8
        if c == 's': t += 4
        elif c == 'x': t = max(t, lo) + 4
        elif c == 'e': t = max(t, lo) + 8
        elif c == 'd': t = max(t, lo) + (8 if pv else 0) + 4
        elif c == 'v': t = max(t, lo) + (8 if pv else 4 if prev == 's' else 0) + 8
        elif c == 'w': t = max(t, lo) + (8 if pv else 0) + 20
        elif c == 'S': t = max(t, lo) + (8 if pv else 4 if prev == 's' else 0) + 24
        elif c == 'b': t = max(t, lo) + 13
        elif c == 'p': t = max(t, free + 12) + 4
        elif c == 'M':
            base = max(t, free); free = base + (32 if "32x32" in otext(o) else 16); t = base + 4
        prev = c
    return max(t, free)
class It:
    def __init__(self, ops, ear=0, deps=(), name=None):
        self.ops = ops if isinstance(ops, list) else [ops]; self.ear = ear; self.deps = list(deps); self.name = name
def items(l, ear=0):
    out = []
    for x in l:
        if isinstance(x, It): out.append(x)
        elif isinstance(x, tuple) and isinstance(x[0], (int, float)): out.append(It(x[1], x[0]))
        else: out.append(It(x, ear))
    return out
def gsched(st, chains, budget=0, lo=0, hi=None, nextpre=(), flush=True):
    ch = [items(c) for c in chains if c]
    n = len(st.m) if hi is None else hi
    placed = {}
    own = {}
    def tail(i): return st.m[i + 1]['pre'] if i + 1 < len(st.m) else list(nextpre)
    def mlen(i): return 32 if "32x32" in st.m[i]['mfma'] else 16
    def ready(it, i): return it.ear <= i and all(d in placed and placed[d] + dl <= i for d, dl in it.deps)
    for i in range(lo, n):
        post = st.m[i]['post']; last = {}
        fixed = len(post)
        while True:
            cand = sorted([(c[0].ear, ci) for ci, c in enumerate(ch) if c and ready(c[0], i)])
            ok = False
            cur = gapcost(post + tail(i), mlen(i))
            for _, ci in cand:
                it = ch[ci][0]
                p0 = last.get(ci, -1) + 1
                for d, dl in it.deps:
                    if placed[d] == i: p0 = len(post)
                best = None
                for p in range(len(post), p0 - 1, -1):
                    if p < len(post) and p > 0 and own.get((i, id(post[p])), 0): continue
                    c = gapcost(post[:p] + it.ops + post[p:] + tail(i), mlen(i))
                    if best is None or c < best[0]: best = (c, p)
                alone = gapcost(it.ops, mlen(i))
                if best[0] <= max(mlen(i) + 4 * (int((i - lo + 1) * budget) - int((i - lo) * budget)), cur) or (not post and not tail(i) and best[0] <= alone):
                    p = best[1]; ops = [o if not isinstance(o, str) else str(o) for o in it.ops]
                    for kk in list(last):
                        if last[kk] >= p: last[kk] += len(ops)
                    post[p:p] = ops
                    for o in ops[1:]: own[(i, id(o))] = 1
                    last[ci] = p + len(ops) - 1
                    if it.name: placed[it.name] = i
                    ch[ci].pop(0); ok = True
                    break
            if not ok: break
    left = 0
    if flush:
        while any(ch):
            prog = False
            for c in ch:
                if c and all(d in placed for d, _ in c[0].deps):
                    it = c.pop(0); st.m[n - 1]['post'] += it.ops; left += len(it.ops); prog = True
                    if it.name: placed[it.name] = n
            assert prog
    return left
def stcost(st, lo=0, nextpre=()):
    tot = 0
    for i in range(lo, len(st.m)):
        tl = st.m[i + 1]['pre'] if i + 1 < len(st.m) else list(nextpre)
        tot += gapcost(st.m[i]['post'] + tl, 32 if "32x32" in st.m[i]['mfma'] else 16)
    return tot
def best_sched(st, chains, lo=0, nextpre=(), verbose=None, budgets=(0, 0.05, 0.1, 0.15, 0.2, 0.3, 0.4, 0.5, 0.7, 1, 1.3, 1.6, 2, 2.5, 3, 4, 5, 6, 8)):
    import copy
    best = None
    for b in budgets:
        s2 = Stream(); s2.m = copy.deepcopy(st.m)
        left = gsched(s2, copy.deepcopy(chains), b, lo, nextpre=nextpre)
        c = stcost(s2, lo, nextpre)
        if best is None or c < best[0]: best = (c, b, left, s2.m)
        if left == 0: break
    st.m = best[3]
    if verbose: print(f"{verbose}: nmfma {len(st.m)-lo} cost {best[0]} budget {best[1]} left {best[2]}")
```

```python
from common import *

def gen_k1(prof=False, stflag='sc1', x=''):
    k = K("k1_kernel"); e = Em(k); sp = Stamps(k, prof, 0)
    R = 4; PD = 3; F = 4; D = 3
    vTR = list(range(1, 5)); vDMA = list(range(5, 9)); vCR = [9, 10]; vST = 11; vXS = 12
    vCD = list(range(224, 232))
    vW = lambda f: 16 + 4 * f
    SETS = [32, 96, 160, 32]
    acc = lambda cg, t, m: SETS[cg] + 16 * t + 4 * m
    aC = lambda ks, m: 16 * ks + 4 * m
    sWa, sWb, sLW, sC, sLC = 32, 33, 34, 35, 36
    CB = 65536
    k("s_cmp_ge_u32 s2, 256\ns_cbranch_scc1 L_k1_end")
    sp.init(); e.ops(sp.stamp())
    k("s_load_dwordx4 s[4:7], s[0:1], 0")
    k("s_load_dwordx4 s[8:11], s[0:1], 24")
    k("s_load_dwordx2 s[12:13], s[0:1], 88")
    k("v_lshrrev_b32 v15, 6, v0\nv_and_b32 v0, 63, v0\nv_readfirstlane_b32 s3, v15")
    k("s_and_b32 s40, s2, 7\ns_lshr_b32 s41, s2, 3\ns_and_b32 s42, s41, 3\ns_lshr_b32 s43, s41, 2")
    k("s_and_b32 s44, s42, 1\ns_lshl_b32 s45, s40, 1\ns_add_u32 s44, s44, s45")
    k("s_lshr_b32 s45, s42, 1")
    k(f"s_lshl_b32 s47, s44, 9")
    k(f"s_lshl_b32 s{sWb}, s3, 18\ns_add_u32 s{sWb}, s{sWb}, s47")
    k(f"s_and_b32 s48, s3, 1\ns_lshl_b32 s48, s48, 18\ns_add_u32 s{sWa}, s47, s48\ns_lshr_b32 s48, s3, 1\ns_lshl_b32 s48, s48, 7\ns_add_u32 s{sWa}, s{sWa}, s48")
    k(f"s_lshl_b32 s{sLW}, s3, 12")
    k(f"s_mul_i32 s{sLC}, s3, 24576\ns_add_u32 s{sLC}, s{sLC}, {CB}")
    k("s_lshl_b32 s46, s43, 2\ns_add_u32 s46, s46, s3")
    k(f"s_lshl_b32 s{sC}, s46, 16")
    k("v_lshrrev_b32 v16, 3, v0\nv_and_b32 v17, 7, v0\nv_lshrrev_b32 v18, 4, v0\nv_xor_b32 v17, v17, v18\nv_lshlrev_b32 v19, 10, v16")
    k(f"v_lshl_add_u32 v{vCD[0]}, v17, 4, v19")
    k(f"v_xor_b32 v{vCD[1]}, 64, v{vCD[0]}\nv_add_u32 v{vCD[1]}, 8192, v{vCD[1]}")
    for i in range(2, 8): k(f"v_add_u32 v{vCD[i]}, {(i & ~1) * 8192}, v{vCD[i & 1]}")
    k("v_bfe_u32 v18, v0, 1, 2\nv_and_b32 v19, 1, v0\nv_bfe_u32 v17, v0, 4, 1")
    k("v_xor_b32 v17, v17, v18")
    k("v_lshlrev_b32 v16, 13, v16\nv_lshl_add_u32 v16, v19, 4, v16")
    for q in range(4):
        k(f"v_xor_b32 v21, {(q&1)<<1}, v17")
        k(f"v_lshl_add_u32 v{vDMA[q]}, v21, 5, v16")
        if q: k(f"v_add_u32 v{vDMA[q]}, {q*8*8192}, v{vDMA[q]}")
    k("s_waitcnt lgkmcnt(0)")
    k("s_cmp_eq_u32 s45, 0\ns_cselect_b32 s16, s8, s10\ns_cselect_b32 s17, s9, s11")
    k(f"s_mov_b32 s18, {512*8192}\ns_mov_b32 s19, 0x20000")
    srd(k, 20, "s6", "s7", 2048 * 1024)
    def sub(s, kl):
        if s < 8: return kl >> 1, 2 * s + (kl & 1)
        return 2 + (s - 8) // 4, 4 * ((s - 8) % 4) + kl
    def dma(s):
        sl = s % R
        so = f"s_add_u32 s57, s{sWa}, {s*64*8192}" if s < 8 else f"s_add_u32 s57, s{sWb}, {(2+(s-8)//4)*128 + ((s-8)%4)*128*8192}"
        return [(([so] if q == 0 else []) + [f"s_add_u32 m0, s{sLW}, {sl*16384 + q*1024}"],
                 ('vm', f"W{s}", f"buffer_load_dwordx4 v{vDMA[q]}, s[16:19], s57 offen lds")) for q in range(4)]
    def cdma(p):
        return [(([f"s_add_u32 s58, s{sC}, {p*128}"] if i == 0 else []) + [f"s_add_u32 m0, s{sLC}, {(p%3)*8192 + i*1024}"],
                 ('vm', f"C{p}", f"buffer_load_dwordx4 v{vCD[i]}, s[20:23], s58 offen lds")) for i in range(8)]
    def cread(p):
        return [('ds', f"c{p}", f"ds_read_b128 a[{aC(2*p+par,m)}:{aC(2*p+par,m)+3}], v{vCR[par]} offset:{(p%3)*8192 + m*2048}") for par in range(2) for m in range(4)]
    def flat(l):
        for a_, b_ in l: e.ops(a_); e.op(b_)
    flat(cdma(0)); flat(dma(0)); flat(cdma(1)); flat(dma(1))
    k("v_and_b32 v24, 31, v0\nv_lshrrev_b32 v25, 5, v0")
    k("s_lshl_b32 s49, s2, 3\ns_lshl_b32 s50, s3, 1\ns_add_u32 s49, s49, s50")
    k("v_add_u32 v25, s49, v25")
    k("v_cmp_gt_u32 s[52:53], 24, v24")
    k("v_mul_u32_u24 v26, 1152, v25\nv_lshl_add_u32 v26, v24, 4, v26")
    k("v_mov_b32 v27, 0x7fffffff\nv_cndmask_b32 v26, v27, v26, s[52:53]")
    srd(k, 28, "s4", "s5", 2048 * 1152)
    flat(cdma(2)); flat(dma(2))
    XV = 160
    for j in range(3):
        e.op(('vm', 'x', f"buffer_load_dwordx4 v[{XV+4*j}:{XV+3+4*j}], v26, s[28:31], 0 offen offset:{j*384}"))
    srd(k, 24, "s12", "s13", WS_SIZE)
    k("v_lshrrev_b32 v16, 4, v0\nv_bfe_u32 v17, v0, 2, 2\nv_and_b32 v18, 3, v0")
    k("v_lshl_add_u32 v19, v16, 3, v17\nv_lshlrev_b32 v19, 7, v19\nv_lshl_add_u32 v19, v18, 3, v19")
    k("v_and_b32 v20, 1, v16\nv_lshrrev_b32 v17, 1, v17\nv_lshl_or_b32 v20, v20, 1, v17")
    for t in range(4):
        k(f"v_xor_b32 v17, {t}, v20\nv_lshl_add_u32 v{vTR[t]}, v17, 5, v19")
    k("v_and_b32 v17, 15, v0\nv_lshrrev_b32 v18, 1, v17\nv_xor_b32 v18, v18, v16\nv_lshlrev_b32 v17, 7, v17")
    k(f"v_lshl_add_u32 v17, v18, 4, v17\nv_xor_b32 v18, 64, v17\nv_add_u32 v{vCR[0]}, s{sLC}, v17\nv_add_u32 v{vCR[1]}, s{sLC}, v18")
    k(f"v_lshlrev_b32 v{vST}, 4, v0")
    k("v_lshrrev_b32 v16, 4, v25\nv_mul_u32_u24 v16, 18432, v16")
    k("v_lshrrev_b32 v17, 2, v24\nv_lshl_add_u32 v16, v17, 10, v16")
    k("v_and_b32 v17, 3, v24\nv_lshl_add_u32 v16, v17, 8, v16")
    k("v_and_b32 v17, 15, v25\nv_lshl_add_u32 v16, v17, 4, v16")
    k(f"v_cndmask_b32 v{vXS}, v27, v16, s[52:53]")
    k(f"s_mov_b32 s50, {WS_XN + 6144}\ns_mov_b32 s51, {WS_XN + 12288}\ns_mov_b32 s49, {WS_XN}")
    k("s_lshl_b32 s54, s44, 20\ns_lshl_b32 s55, s46, 14\ns_add_u32 s54, s54, s55")
    k(f"s_lshl_b32 s55, s45, 24\ns_add_u32 s54, s54, s55\ns_add_u32 s54, s54, {WS_KF}")
    k(f"s_mov_b32 s60, {KSCALE_HEX}\ns_mov_b32 s61, {KSCALE_HEX}")
    c = Cap()
    Fv = list(range(176, 200))
    for i in range(12):
        c(f"v_lshlrev_b32 v{Fv[2*i]}, 16, v{XV+i}\nv_and_b32 v{Fv[2*i+1]}, 0xffff0000, v{XV+i}")
    def red(x_, t): red16(c, x_); red_swap(c, x_, t, 16)
    ln_core(c, Fv, 576, [200, 201, 202, 203, 204], red, "s[52:53]")
    lnops = [('wvm', 'x')] + c.L + [('vm', 'xs', f"buffer_store_dwordx4 v[{176+4*j}:{179+4*j}], v{vXS}, s[24:27], s{49+j} offen {stflag}") for j in range(3)]
    e.ops(sp.stamp())
    e.op(('wvm', 'C0')); e.ops(cread(0))
    e.op(('wvm', 'W0')); k("s_barrier")
    k("s_cmp_eq_u32 s45, 0\ns_cbranch_scc0 L_k1_v")
    vmq0 = list(e.vm.q); dsq0 = list(e.ds.q); n0 = sp.n
    seq = []
    for s in range(12):
        for kl in range(4):
            for t in range(4): seq.append((s, kl, t))
    for half in range(2):
        for s in range(12, 16):
            for kl in range(4):
                for t in (2 * half, 2 * half + 1): seq.append((s, kl, t))
    first_use = {}
    for i, (s, kl, t) in enumerate(seq): first_use.setdefault(s, i)
    for isV in (0, 1):
        if isV: k.label("L_k1_v")
        e.vm.q = list(vmq0); e.ds.q = list(dsq0); sp.n = n0
        def wread(gf):
            s, kl, t = seq[gf]; sl = s % R; b = vW(gf % F)
            return [('ds', f"w{gf}", f"ds_read_b64_tr_b16 v[{b+2*rd}:{b+2*rd+1}], v{vTR[t]} offset:{sl*16384 + kl*4096 + rd*512}") for rd in range(2)]
        for gf in range(PD): e.ops(wread(gf))
        e.ops(sp.stamp())
        st = Stream()
        done = {}
        for gf, (s, kl, t) in enumerate(seq):
            cg, ks = sub(s, kl)
            for m in range(4):
                w = f"v[{vW(gf%F)}:{vW(gf%F)+3}]"; cc = f"a[{aC(ks,m)}:{aC(ks,m)+3}]"
                A, B = (cc, w) if isV else (w, cc)
                pre = []
                if m == 0:
                    nx = gf + PD
                    if nx < len(seq) and first_use[seq[nx][0]] == nx:
                        pre = [('wboth', f"W{seq[nx][0]}", f"w{gf}"), "s_barrier"]
                    else: pre = [('wds', f"w{gf}")]
                d = acc(cg, t, m)
                i = st.add(f"{MFMA} v[{d}:{d+3}], {A}, {B}, {f'v[{d}:{d+3}]' if ks else 0}", pre)
                done[(cg, t, m)] = i
                if m < 2 and gf + PD < len(seq): st.post(i, wread(gf + PD)[m])
        for s in range(13):
            base = s * 64
            g = dma(s + D)
            if s + 3 < 8:
                cl = cdma(s + 3)
                g = [cl[0], cl[1], g[0], cl[2], cl[3], g[1], cl[4], cl[5], g[2], cl[6], cl[7], g[3]]
            span = 64 if s < 12 else 32
            for i, (su, ld) in enumerate(g):
                p = base + 3 + ((i * span) // len(g)) // 4 * 4 if len(g) == 4 else base + [3, 7, 11, 19, 23, 27, 35, 39, 43, 51, 55, 59][i]
                for z in su: st.post(p - 1, z)
                st.post(p, ld)
            if s + 1 < 8:
                cr = cread(s + 1)
                st.post(base + 14, ('wvm', f"C{s+1}"))
                for i, o in enumerate(cr): st.post(base + [14, 15, 30, 31, 46, 47, 50, 54][i], o)
        endln = place(st, 2 * 64, lnops, step=1, cap=2)
        assert endln < 500, endln
        def jobs_for(cg, ts):
            J = []
            for t in ts:
                T = cg * 4 + t
                for m in range(4):
                    if not isV and t % 2 == 1:
                        off = (T >> 3) * 64 * 8192 + (m >> 1) * 8192 + ((m & 1) * 4 + ((T & 7) >> 1)) * 1024
                        J.append((done[(cg, t, m)], acc(cg, t - 1, m), acc(cg, t, m), off))
                    if isV and m % 2 == 1:
                        off = (T >> 3) * 64 * 8192 + (m >> 1) * 8192 + (T & 7) * 1024
                        J.append((done[(cg, t, m)], acc(cg, t, m - 1), acc(cg, t, m), off))
            return J
        tail = []
        def sched(J, start, step):
            pos = start
            for (rdy, a_, b_, off) in J:
                ops = ([] if isV else [f"v_pk_mul_f32 v[{z}:{z+1}], v[{z}:{z+1}], s[60:61]" for z in (a_, a_+2, b_, b_+2)]) + [
                       f"v_cvt_pk_bf16_f32 v{a_}, v{a_}, v{a_+1}", f"v_cvt_pk_bf16_f32 v{a_+1}, v{a_+2}, v{a_+3}",
                       f"v_cvt_pk_bf16_f32 v{a_+2}, v{b_}, v{b_+1}", f"v_cvt_pk_bf16_f32 v{a_+3}, v{b_+2}, v{b_+3}",
                       f"s_add_u32 s56, s54, {off & ~4095}",
                       ('vm', 'st', f"buffer_store_dwordx4 v[{a_}:{a_+3}], v{vST}, s[24:27], s56 offen offset:{off & 4095} {stflag}")]
                p = max(pos, rdy + 4)
                if p + 8 < len(st.m): place(st, p, ops, step=0, cap=2)
                else: tail.extend(ops)
                pos = p + step
            return pos
        p = sched(jobs_for(0, range(4)), 7 * 64 + 36, 16)
        p = sched(jobs_for(1, range(4)), p, 18)
        assert p < 12 * 64 + 16
        sched(jobs_for(2, range(4)), 12 * 64 + 6, 16)
        sched(jobs_for(3, (0, 1)), 14 * 64 + 6, 24)
        sched(jobs_for(3, (2, 3)), 0, 0)
        for z in sp.stamp(): st.pre(4 * 64, z)
        for z in sp.stamp(): st.pre(8 * 64, z)
        for z in sp.stamp(): st.pre(12 * 64, z)
        e.stream(st)
        e.ops(sp.stamp())
        e.ops(tail)
        sp.dump(24, 3)
        k("s_endpgm")
    k.label("L_k1_end"); k("s_endpgm")
    return k, 512, 102, 256
```

```python
from common import *

def before(st, ta, tb):
    lin = []
    for x in st.m: lin += x['pre'] + [x['mfma']] + x['post']
    lin = [otext(o) for o in lin]
    a_ = [i for i, o in enumerate(lin) if ta in o]; b_ = [i for i, o in enumerate(lin) if tb in o]
    assert a_ and b_ and max(a_) < min(b_), (ta, tb, a_, b_)

def gen_k2(prof=False, stflag='sc1', force_mode=0, vb=True):
    k = K("k2_kernel"); e = Em(k); sp = Stamps(k, prof, 1)
    vL16, vKrd, vVrd, vQx, vNEG = 1, 2, 3, 4, 5
    vDMA = [10, 11, 12, 13]
    vINV = [6, 8, 10, 12]
    vT = [14, 15, 16, 17, 18, 19]
    BL = 14
    CHK = 20
    L = lambda m: [24, 26, 28, 32][m]
    CIN = lambda i: 36 + 4 * i
    BASE = lambda m: 48 + 4 * m
    P = lambda par, m: 64 + 16 * par + 4 * m
    S = lambda m, kt: 96 + 8 * m + 4 * kt
    O = lambda m, dt: 128 + 32 * m + 4 * dt
    WF = lambda f: 96 + 4 * f
    aX = lambda ks, m: 16 * (ks % 16) + 4 * m
    aK = lambda par, kt, s: 64 + 32 * par + 16 * kt + 4 * s
    aV = lambda par, dt: 128 + 32 * par + 4 * dt
    aQ = lambda m, s: 192 + 16 * m + 4 * s
    aW8 = lambda kl, dt: 128 + 32 * kl + 4 * dt
    aZ = 32; aONE = 36; aBL = 40
    sOFF, sDEL, sLB, sT2, sH, sJ, sCNT, sPH, sTRIG, sMODE, sXN, sCS, sCL = 20, 21, 22, 23, 24, 25, 26, 27, 28, 29, 30, 31, 32
    sLBJ, sLBJ2 = 33, 42
    TRI = lambda r: f"s[{34+2*r}:{35+2*r}]"
    sXT = [44, 45, 46, 47]
    QEX = "s[52:53]"; BAD = "s[54:55]"
    sWO, sWL, sQ0, sNU = 56, 57, 58, 59
    XB = 131072
    WREG = [3, 0, 4, 1, 5, 8, 9, 6, 7]
    vr = lambda b, n=4: f"v[{b}:{b+n-1}]"
    ar = lambda b, n=4: f"a[{b}:{b+n-1}]"

    k("s_cmp_ge_u32 s2, 256\ns_cbranch_scc1 L_k2_end")
    sp.init(); e.ops(sp.stamp())
    k("s_load_dwordx2 s[4:5], s[0:1], 16")
    k("s_load_dwordx2 s[6:7], s[0:1], 88")
    k("v_lshrrev_b32 v15, 6, v0\nv_and_b32 v0, 63, v0\nv_readfirstlane_b32 s3, v15")
    k(f"s_and_b32 s60, s2, 7\ns_lshr_b32 s61, s2, 3\ns_and_b32 s62, s61, 3\ns_lshr_b32 s{sJ}, s61, 2")
    k(f"s_lshl_b32 s{sH}, s60, 2\ns_add_u32 s{sH}, s{sH}, s62")
    k(f"s_mov_b32 s{sMODE}, {force_mode}")
    k(f"v_lshlrev_b32 v{vL16}, 4, v0\nv_mov_b32 v{vNEG}, 0xf149f2ca")
    k(f"s_sub_u32 s60, 15, s{sJ}\ns_lshl_b32 s60, s60, 1\ns_and_b32 s61, s3, 1\ns_add_u32 s60, s60, s61")
    k(f"s_lshl_b32 s62, s{sJ}, 1\ns_add_u32 s62, s62, 3\ns_sub_u32 s62, s62, s3")
    k(f"s_cmp_lt_u32 s3, 2\ns_cselect_b32 s63, s60, s62\ns_cselect_b64 {QEX}, -1, 0")
    k(f"s_lshl_b32 s{sQ0}, s63, 6\ns_lshl_b32 s{sNU}, s63, 1\ns_add_u32 s{sNU}, s{sNU}, 2")
    k(f"s_mul_i32 s{sXN}, s63, {4*18432}")
    if WS_XN: k(f"s_add_u32 s{sXN}, s{sXN}, {WS_XN}")
    k(f"s_lshl_b32 s61, s{sH}, 12\ns_add_u32 s61, s61, {WS_CTX}")
    k(f"s_lshl_b32 s{sCS}, s62, 19\ns_add_u32 s{sCS}, s{sCS}, s61")
    k(f"s_lshl_b32 s{sCL}, s60, 19\ns_add_u32 s{sCL}, s{sCL}, s61")
    k(f"s_and_b32 s60, s3, 1\ns_lshr_b32 s61, s3, 1")
    k(f"s_lshl_b32 s{sWO}, s61, 18\ns_lshl_b32 s62, s60, 7\ns_add_u32 s{sWO}, s{sWO}, s62")
    k(f"s_lshl_b32 s{sWL}, s60, 13\ns_lshl_b32 s62, s61, 12\ns_add_u32 s{sWL}, s{sWL}, s62")
    k(f"s_lshl_b32 s{sLB}, s61, 16\ns_lshl_b32 s62, s60, 13\ns_add_u32 s{sLB}, s{sLB}, s62")
    k(f"s_cmp_lt_u32 s3, 2\ns_cselect_b32 s{sDEL}, 1, -1\ns_lshl_b32 s{sDEL}, s{sDEL}, 13")
    k(f"s_lshl_b32 s48, s60, 24\ns_lshl_b32 s63, s{sH}, 19\ns_add_u32 s48, s48, s63\ns_mul_i32 s63, s61, {33*8192}\ns_add_u32 s48, s48, s63\ns_add_u32 s48, s48, {WS_KF}")
    k(f"s_lshl_b32 s62, s{sJ}, 15\ns_sub_u32 s62, {31*8192}, s62\ns_cmp_lt_u32 s3, 2\ns_cselect_b32 s18, {33*8192}, s62\ns_mov_b32 s19, 0x20000")
    for i in range(16): k(f"v_mov_b32 v{BASE(0)+i}, 0")
    for i in range(4): k(f"v_mov_b32 v{P(0,0)+i}, 0")
    k(f"s_lshl_b32 s62, s{sH}, 8\ns_sub_u32 s10, {576*8192}, s62\ns_mov_b32 s11, 0x20000")
    k("s_waitcnt lgkmcnt(0)")
    k(f"s_add_u32 s8, s4, s62\ns_addc_u32 s9, s5, 0")
    srd(k, 12, "s6", "s7", WS_SIZE)
    k(f"s_add_u32 s16, s6, s48\ns_addc_u32 s17, s7, 0")
    assert WS_VF - WS_KF == 1 << 24
    k.label("L_k2_start")
    k("v_lshrrev_b32 v16, 3, v0\nv_bfe_u32 v18, v0, 1, 2\nv_and_b32 v19, 1, v0\nv_bfe_u32 v17, v0, 4, 1")
    k("v_xor_b32 v17, v17, v18")
    k("v_lshlrev_b32 v16, 13, v16\nv_lshl_add_u32 v16, v19, 4, v16")
    for q in range(4):
        k(f"v_xor_b32 v14, {(q&1)<<1}, v17")
        k(f"v_lshl_add_u32 v{vDMA[q]}, v14, 5, v16")
        if q: k(f"v_add_u32 v{vDMA[q]}, {q*(8*8192-1024)}, v{vDMA[q]}")
    def blk_loads(b):
        o = [f"s_add_u32 s60, s{sWO}, {b*64*8192}", f"s_add_u32 m0, s{sWL}, {WREG[b]*16384}"]
        o += [f"s_add_u32 s{sXT[m]}, s{sXN}, {m*18432 + b*2048}" for m in range(4)]
        o += [('vm', f"W{b}", f"buffer_load_dwordx4 v{vDMA[q]}, s[8:11], s60 offen offset:{q*1024} lds") for q in range(4)]
        for kl in range(2):
            for m in range(4):
                o.append(('vm', f"X{2*b+kl}", f"buffer_load_dwordx4 {ar(aX(2*b+kl,m))}, v{vL16}, s[12:15], s{sXT[m]} offen offset:{kl*1024}"))
        return o
    def sdma(slot, tag, lb=sLB):
        o = [f"s_add_u32 m0, s{lb}, {slot*16384}", f"s_add_u32 s{sT2}, s{sOFF}, 4096"]
        for i in range(8):
            if i == 4: o += [f"s_add_u32 m0, s{lb}, {slot*16384 + 4096}", f"s_add_u32 s{sOFF}, s{sOFF}, s{sDEL}"]
            so = sOFF if i < 4 else sT2
            o.append(('vm', tag, f"buffer_load_dwordx4 v{vL16}, s[16:19], s{so} offen offset:{(i&3)*1024} lds"))
        return o
    e.ops(blk_loads(0))
    k("v_lshrrev_b32 v16, 4, v0\nv_bfe_u32 v17, v0, 2, 2\nv_and_b32 v18, 3, v0")
    k("v_lshl_add_u32 v19, v16, 3, v17\nv_lshlrev_b32 v19, 7, v19\nv_lshl_add_u32 v19, v18, 3, v19")
    k("v_and_b32 v14, 1, v16\nv_lshrrev_b32 v17, 1, v17\nv_lshl_or_b32 v14, v14, 1, v17")
    TR2 = [36, 40, 44]
    for t in range(4):
        k(f"v_xor_b32 v17, {t}, v14\nv_lshl_add_u32 v{TR2[0]+t}, v17, 5, v19")
        k(f"v_add_u32 v{TR2[1]+t}, 0x10000, v{TR2[0]+t}\nv_add_u32 v{TR2[2]+t}, 0x20000, v{TR2[0]+t}")
    e.ops(blk_loads(1))
    k("v_lshlrev_b32 v16, 2, v16\nv_and_b32 v17, 15, v0\nv_sub_u32 v16, v17, v16")
    for r in range(4): k(f"v_cmp_gt_i32 {TRI(r)}, {r}, v16")
    k(f"s_lshl_b32 s60, s3, 13\ns_sub_u32 s61, 0, s60\ns_add_u32 s60, s60, {30*8192}\ns_cmp_lt_u32 s3, 2\ns_cselect_b32 s{sOFF}, s61, s60")
    k(f"s_cselect_b32 s{sLBJ}, s{sLB}, 8192")
    k(f"s_cselect_b32 s{sLBJ2}, s{sLB}, {8192-16384}")
    k(f"s_mov_b64 {BAD}, 0")
    k(f"s_cselect_b32 s{sCNT}, 8, s{sJ}")
    k(f"s_sub_u32 s60, 4, s3\ns_cmp_lt_u32 s3, 2\ns_cselect_b32 s{sPH}, 0, s60")
    k(f"s_lshl_b32 s60, s3, 3\ns_add_u32 s60, s60, s{sJ}\ns_cmp_eq_u32 s60, 7\ns_cselect_b32 s{sTRIG}, 1, -1\ns_cmp_eq_u32 s3, 3\ns_cselect_b32 s{sTRIG}, 1, s{sTRIG}")
    k(f"s_cmp_eq_u32 s60, 24\ns_cselect_b64 s[50:51], -1, 0")
    k(f"v_mov_b32 v{vKrd}, v{vL16}\nv_mov_b32 v{vVrd}, v{vL16}")
    k(f"s_and_b32 s60, s3, 1\ns_lshl_b32 s60, s60, 14\ns_add_u32 s60, s60, {XB}\nv_add_u32 v{vQx}, s60, v{vL16}")
    for i in range(4): k(f"v_mov_b32 v{CHK+i}, 0\nv_mov_b32 v{BL+i}, v{P(0,0)+i}")
    k(f"v_mov_b32 v18, 0x3f803f80")
    e.ops(blk_loads(2))
    e.ops(sp.stamp())

    PD = 3; F = 4
    def wrd(b, kl, dt, dst, tag):
        reg = WREG[b]; base = TR2[reg // 4]; off = (reg % 4) * 16384 + (dt >> 2) * 8192 + kl * 4096
        return [('ds', tag, f"ds_read_b64_tr_b16 {dst[0]}[{dst[1]+2*rd}:{dst[1]+2*rd+1}], v{base + (dt & 3)} offset:{off + rd*512}") for rd in range(2)]
    seq = [(ks, dt) for ks in range(16) for dt in range(8)]
    def wread(gf):
        ks, dt = seq[gf]
        return wrd(ks >> 1, ks & 1, dt, ('v', WF(gf % F)), f"w{gf}")
    e.op(('wvm', 'W0')); k("s_barrier")
    for gf in range(PD): e.ops(wread(gf))
    e.op(('wboth', 'X0', 'w0'))
    e.ops(sp.stamp())
    st = Stream()
    for gf, (ks, dt) in enumerate(seq):
        for m in range(4):
            d = O(m, dt)
            i = st.add(f"{MFMA} {vr(d)}, {vr(WF(gf%F))}, {ar(aX(ks,m))}, {vr(d) if ks else 0}")
            if m == 0 and gf + PD < len(seq):
                for o in wread(gf + PD): st.post(i, o)
            if m == 3:
                g1 = gf + 1; nx = g1 + PD
                if g1 == 113: w = [('wboth', "W8", f"w{g1}"), "s_barrier"]
                elif g1 == 128: w = [('wboth', "X17", "w8x"), "s_barrier"]
                elif nx % 16 == 0 and nx < 128: w = [('wboth', f"W{nx//16}", f"w{g1}"), "s_barrier"]
                elif g1 % 8 == 0: w = [('wboth', f"X{g1//8}", f"w{g1}")]
                else: w = [('wds', f"w{g1}")]
                for o in w: st.post(i, o)
    ch_w8 = []
    for kl in range(2):
        for dt in range(8):
            for o in wrd(8, kl, dt, ('a', aW8(kl, dt)), "w8x"): ch_w8.append((113 * 4, o))
    qdone = {}
    for m in range(4):
        for kl in range(2):
            for dt in range(8):
                d = O(m, dt)
                qdone[m] = st.add(f"{MFMA} {vr(d)}, {ar(aW8(kl,dt))}, {ar(aX(16+kl,m))}, {vr(d)}")
    NQ = len(st.m)
    ch_mem = []
    def spread(lst, a, b):
        for i, o in enumerate(lst): ch_mem.append((a + (b - a) * i // len(lst), o))
    spread(blk_loads(3) + blk_loads(4), 0, 60)
    spread(blk_loads(5) + sdma(2, "S-2", sLBJ), 64, 64 + 60)
    spread(blk_loads(6), 128, 128 + 60)
    spread(blk_loads(7) + sdma(3, "S-1", sLBJ2), 192, 192 + 60)
    spread(blk_loads(8), 256, 256 + 60)
    spread(sdma(0, "S0"), 320, 320 + 60)
    spread(sdma(1, "S1"), 384, 384 + 60)
    ch_c = [(200, f"v_accvgpr_write_b32 a{aZ+i}, 0") for i in range(4)] + [(200, f"v_accvgpr_write_b32 a{aONE+i}, v18") for i in range(4)]
    def kread(par, slot): return [('ds', 'kv', f"ds_read_b128 {ar(aK(par,kt,s))}, v{vKrd} offset:{slot*16384 + (kt*4+s)*1024}") for s in range(4) for kt in range(2)]
    def vread(par, slot): return [('ds', 'kv', f"ds_read_b128 {ar(aV(par,dt))}, v{vVrd} offset:{slot*16384 + 8192 + dt*1024}") for dt in range(8)]
    ch_k0 = [(512, o) for i, o in enumerate(kread(0, 2))]
    def qconv(m, at):
        c = []
        for s in range(4):
            a_, b_ = O(m, 2 * s), O(m, 2 * s + 1)
            c += [(at, f"v_cvt_pk_bf16_f32 v{a_}, v{a_}, v{a_+1}"), (at, f"v_cvt_pk_bf16_f32 v{a_+1}, v{a_+2}, v{a_+3}"),
                  (at, f"v_cvt_pk_bf16_f32 v{a_+2}, v{b_}, v{b_+1}"), (at, f"v_cvt_pk_bf16_f32 v{a_+3}, v{b_+2}, v{b_+3}")]
            c += [(at, f"v_accvgpr_write_b32 a{aQ(m,s)+i}, v{a_+i}") for i in range(4)]
        return c
    def qwrite(m, at):
        return [(at, [f"s_mov_b64 exec, {QEX}"] + [('ds', 'kv', f"ds_write_b128 v{vQx}, {ar(aQ(m,s))} offset:{(m*4+s)*1024}") for s in range(4)] + ["s_mov_b64 exec, -1"])]
    def d0_cin(at, full=None, tri=TRI):
        c = [(at, f"v_cndmask_b32 v{CIN(0)+r}, v{BASE(0)+r}, v{vNEG}, {tri(r)}") for r in range(4)]
        if full: c += [(at, f"v_mov_b32 v{CIN(1)+r}, v{vNEG}") for r in range(4)]
        c += [(at, f"v_cndmask_b32 v{CIN(2)+r}, v{BASE(1)+r}, v{vNEG}, {tri(r)}") for r in range(4)]
        return c
    def d1_cin(at):
        return [(at, f"v_cndmask_b32 v{CIN(0)+r}, v{BASE(2)+r}, v{vNEG}, {TRI(r)}") for r in range(4)] + \
               [(at, f"v_cndmask_b32 v{CIN(2)+r}, v{BASE(3)+r}, v{vNEG}, {TRI(r)}") for r in range(4)]
    def open_cin(at):
        return [(at, f"v_mov_b32 v{CIN(i)+r}, v{BASE(i//2)}") for i in range(3) for r in range(4)]

    QK_OPEN = {(m, kt): BASE(m) for m in range(4) for kt in range(2)}
    QK_DYN = dict(QK_OPEN); QK_DYN[(0, 0)] = CIN(0); QK_DYN[(0, 1)] = CIN(1); QK_DYN[(1, 1)] = CIN(2)
    QK_D0 = dict(QK_DYN); del QK_D0[(0, 1)]
    QK_D1 = {(2, 0): CIN(0), (3, 0): BASE(3), (3, 1): CIN(2)}
    STD = [('q', 0), ('q', 1), ('p', 0), ('q', 2), ('p', 1), ('q', 3), ('p', 2), ('p', 3)]
    def add_step(st, t, qk, pv, order, linit=(), top=None, mem=True):
        par = t & 1; slot = t % 4
        base = len(st.m); info = {}
        first = True
        ex = []; cv = []; ad = []
        for kind, m in order:
            if kind == 'q':
                kts = [kt for kt in range(2) if (m, kt) in qk]
                if not kts: continue
                fin_i = {}
                for s in range(4):
                    for kt in kts:
                        d = S(m, kt)
                        i = st.add(f"{MFMA} {vr(d)}, {ar(aK(par^1,kt,s))}, {ar(aQ(m,s))}, {vr(d) if s else vr(qk[(m,kt)])}", top if first else None)
                        first = False; fin_i[kt] = i
                info[('q', m)] = i
                ini = m in linit
                for kt in range(2):
                    d = S(m, kt); p = P(par ^ 1, m) + 2 * kt
                    if kt not in kts:
                        cv += [It(f"v_mov_b32 v{p}, 0", base), It(f"v_mov_b32 v{p+1}, 0", base)]; continue
                    for r in range(4): ex.append(It(f"v_exp_f32 v{d+r}, v{d+r}", fin_i[kt] + 4, name=f"e{d+r}"))
                    for hf in range(2):
                        cv.append(It(f"v_cvt_pk_bf16_f32 v{p+hf}, v{d+2*hf}, v{d+2*hf+1}", fin_i[kt] + 5, deps=[(f"e{d+2*hf+1}", 1)]))
                    if m < 2:
                        if ini:
                            ad += [It(f"v_add_f32 v{L(m)+r}, v{d+r}, v{d+2+r}", fin_i[kt] + 8, deps=[(f"e{d+2+r}", 1)]) for r in range(2)]; ini = False
                        else:
                            ad += [It(f"v_add_f32 v{L(m)+(r&1)}, v{L(m)+(r&1)}, v{d+r}", fin_i[kt] + 8, deps=[(f"e{d+r}", 1)]) for r in range(4)]
            else:
                if m not in pv: continue
                for dt in range(8):
                    d = O(m, dt)
                    i = st.add(f"{MFMA} {vr(d)}, {ar(aV(par,dt))}, {vr(P(par,m))}, {vr(d) if pv[m]=='acc' else 0}", top if first else None)
                    first = False
                    if dt == 3 and m >= 2:
                        st.add(f"{MFMA} {vr(L(m))}, {ar(aONE)}, {vr(P(par,m))}, {vr(L(m)) if pv[m]=='acc' else 0}")
                info[('p', m)] = i
        n = len(st.m) - base
        chains = [ex, cv, ad]
        if mem:
            rd = []
            for a_, b_ in zip(kread(par, slot), vread(par ^ 1, slot)): rd += [a_, b_]
            if n >= 60:
                rt = [0, 0, 2, 2, 4, 4, 6, 6, 8, 8] + [14, 20, 26, 32, 38, 44]
                vt = [0, 0, 1, 3, 5, 7, 7, 7, 9, 24, 40, 52]
            else:
                rt = [(i * n * 5) // (16 * 8) for i in range(16)]; vt = [(i * (n - 4)) // 12 for i in range(12)]
            chains.append([It(o, base + rt[i]) for i, o in enumerate(rd)])
            chains.append([It(o, base + vt[i]) for i, o in enumerate(sdma((t + 3) % 4, f"S{t+3}"))])
        return chains, info
    PV_ACC = {m: 'acc' for m in range(4)}

    def linv(m, at, partner=None):
        x = vINV[m]; t = vINV[m] + 1
        if partner is not None: c = [f"v_add_f32 v{x}, v{L(m)}, v{partner}"]
        elif m < 2: c = [f"v_add_f32 v{x}, v{L(m)}, v{L(m)+1}"]
        else: c = [f"v_mov_b32 v{x}, v{L(m)}"]
        if m < 2:
            for w in (16, 32):
                c += [f"v_mov_b32 v{t}, v{x}", f"v_permlane{w}_swap_b32 v{x}, v{t}", f"v_add_f32 v{x}, v{x}, v{t}"]
        c += [f"v_add_u32 v{t}, 0xde800000, v{x}", [f"v_cmp_lt_u32 vcc, 0x3c000000, v{t}", f"v_rcp_f32 v{x}, v{x}", f"s_or_b64 {BAD}, {BAD}, vcc"]]
        return [(at, o) for o in c]
    def fin(m, at, sbase, add=None):
        c = [f"s_add_u32 s63, s{sbase}, {m*131072}"]; ck = []
        for s in range(4):
            a_, b_ = O(m, 2 * s), O(m, 2 * s + 1)
            if add is not None:
                c += [('wds', f"x{m}{s}")]
                c += [f"v_pk_add_f32 {vr(a_+2*i,2)}, {vr(a_+2*i,2)}, {vr(add+8*s+2*i,2)}" for i in range(4)]
                c += [f"v_pk_mul_f32 {vr(a_+2*i,2)}, {vr(a_+2*i,2)}, {vr(vINV[m],2)} op_sel_hi:[1,0]" for i in range(4)]
            else:
                c += [f"v_mul_f32 v{a_+i}, v{a_+i}, v{vINV[m]}" for i in range(8)]
            c += [f"v_cvt_pk_bf16_f32 v{a_+i}, v{a_+2*i}, v{a_+2*i+1}" for i in range(4)]
            c += [('vm', 'st', f"buffer_store_dwordx4 {vr(a_)}, v{vL16}, s[12:15], s63 offen offset:{s*1024} {stflag}")]
            (c if add is None else ck).append(f"{MFMA} {vr(CHK)}, {ar(aZ)}, {vr(a_)}, {vr(CHK)}")
        if add is not None: return c, ck
        return [(at, o) for o in c]

    TOP = ["s_waitcnt vmcnt(16) lgkmcnt(0)", "s_barrier"]
    top = [('wboth', "S-1", "kv"), "s_barrier"]
    chs, info = add_step(st, -1, QK_DYN, {}, [('q', m) for m in range(4)], linit=(0, 1), top=top)
    NZ = len(st.m)
    ZM = "v_mfma_f32_32x32x16_bf16"
    for i in range(8): st.add(f"{ZM} {vr(O(0,0)+16*i,16)}, {ar(aZ)}, {ar(aZ)}, 0")
    ch_q = []
    for m in range(4): ch_q += qconv(m, qdone[m] + 2)
    ch_qw = []
    for m in range(4): ch_qw += qwrite(m, NZ + 2 * m)
    DT = lambda r: f"s[{60+2*(r&1)}:{61+2*(r&1)}]"
    cin0 = []
    for r in range(4):
        cin0 += [(512, f"s_and_b64 {DT(r)}, {TRI(r)}, s[50:51]"),
                 (512, f"v_cndmask_b32 v{CIN(0)+r}, v{BASE(0)+r}, v{vNEG}, {DT(r)}"), (512, f"v_cndmask_b32 v{CIN(2)+r}, v{BASE(1)+r}, v{vNEG}, {DT(r)}"),
                 (512, f"v_cndmask_b32 v{CIN(1)+r}, v{BASE(0)+r}, v{vNEG}, s[50:51]")]
    zl = [(NQ, f"v_mov_b32 v{L(2)+i}, 0") for i in range(8)]
    left = gsched(st, [ch_w8, ch_mem, ch_c], 0, hi=512); assert left == 0, left
    left = gsched(st, [ch_k0, cin0, ch_q], 0, lo=512, hi=NQ + 22); print("k2 qconv left", left)
    best_sched(st, chs + [ch_qw, zl], lo=NQ, nextpre=TOP, verbose="step-1")
    print("qproj cost", stcost(st, 0) - stcost(st, NQ))
    def pos_of(txt):
        return max(i for i, x in enumerate(st.m) for o in x['post'] if txt in otext(o))
    assert pos_of("ds_read_b64_tr") < 511
    for m in range(4): assert pos_of(f"v_accvgpr_write_b32 a{aQ(m,3)+3},") < NQ + 8 * m, m
    for z in sp.stamp(): st.pre(NQ, z)
    e.stream(st)
    k(f"s_cmp_eq_u32 s{sMODE}, 1\ns_cbranch_scc1 L_k2_maxp")
    e.ops(sp.stamp())
    k.label("L_k2_disp")
    k(f"s_cmp_eq_u32 s{sCNT}, 0\ns_cbranch_scc1 L_k2_exit")
    k.label("L_k2_loop")
    for t in range(4):
        st = Stream()
        chs, info = add_step(st, t, QK_DYN if t == 3 else QK_OPEN, PV_ACC, STD, top=TOP)
        nxt = list(TOP)
        if t == 2:
            chs.append([(62, f"s_cmp_eq_u32 s{sCNT}, s{sTRIG}")]); nxt = ["s_cbranch_scc1 x"] + TOP
        if t == 3:
            chs.append([(40, f"s_sub_u32 s{sCNT}, s{sCNT}, 1"), (62, f"s_cmp_lg_u32 s{sCNT}, 0")]); nxt = ["s_cbranch_scc1 x"] + TOP
        best_sched(st, chs, nextpre=nxt, verbose=f"plain{t}")
        if t >= 2: before(st, "s_add_u32", "s_cmp_")
        e.stream(st)
        if t == 2:
            k("s_cbranch_scc1 L_k2_mask"); k.label("L_k2_maskret")
    k(f"s_cbranch_scc1 L_k2_loop")
    k.label("L_k2_exit")
    k(f"s_cmp_eq_u32 s{sPH}, 0\ns_cbranch_scc1 L_k2_tail01")
    k(f"s_cmp_eq_u32 s{sPH}, 3\ns_cbranch_scc1 L_k2_tail23")
    k(f"s_cmp_eq_u32 s{sPH}, 2\ns_cbranch_scc1 L_k2_sp2")
    def seed(t):
        e.vm.q = [f"S{t}"] * 8 + [f"S{t+1}"] * 8 + [f"S{t+2}"] * 8; e.ds.q = ['kv']
    def topx(t): return [('wboth', f"S{t}", "kv"), "s_barrier"]
    def qlread(m, at): return [(at, ('ds', 'kv', f"ds_read_b128 {ar(aQ(m,s))}, v{vQx} offset:{(m*4+s)*1024}")) for s in range(4)]
    def basesw(m, at): return [(at, f"v_mov_b32 v{BASE(m)+r}, v{BL+m}") for r in range(4)]
    def trans(t0, name, cut=None):
        st = Stream()
        pre = [o for _, o in d1_cin(0)] + [f"v_add_u32 v{vKrd}, 0x10000, v{vKrd}"]
        chs, info = add_step(st, t0, QK_D1, PV_ACC, [('q', 3), ('q', 2), ('p', 0), ('p', 1), ('p', 2), ('p', 3)], top=pre + topx(t0))
        chs.append(qlread(0, 0) + qlread(1, 2) + qlread(3, info[('q', 3)] + 1) + qlread(2, info[('q', 2)] + 1))
        chs.append(linv(0, 0) + linv(1, 0) + basesw(0, 0) + basesw(1, 0) + basesw(3, 10) + basesw(2, 12) + d1_cin(12) + fin(0, info[('p', 0)] + 3, sCS))
        best_sched(st, chs, nextpre=TOP, verbose=name + "A"); e.stream(st)
        st = Stream()
        pre = [f"v_add_u32 v{vVrd}, 0x10000, v{vVrd}"]
        chs, info = add_step(st, t0 + 1, QK_D1, {2: 'acc', 3: 'acc'}, [('p', 2), ('p', 3), ('q', 3), ('q', 2)], top=pre + topx(t0 + 1))
        chs.insert(0, linv(2, info[('p', 2)]) + fin(2, info[('p', 2)] + 3, sCS) + linv(3, info[('p', 3)]) + fin(3, info[('p', 3)] + 3, sCS))
        chs.append(d0_cin(info[('q', 2)] - 2))
        best_sched(st, chs, nextpre=TOP, verbose=name + "B"); e.stream(st)
        if cut: k(f"s_cmp_eq_u32 s{sJ}, 7\ns_cbranch_scc1 {cut}")
        st = Stream()
        chs, info = add_step(st, t0 + 2, QK_D0, {2: 'zero', 3: 'zero'}, [('q', 0), ('q', 1), ('q', 2), ('q', 3), ('p', 2), ('p', 3)], linit=(0, 1), top=topx(t0 + 2))
        chs.append(fin(1, 0, sCS) + open_cin(16))
        best_sched(st, chs, nextpre=TOP, verbose=name + "C"); e.stream(st)
        st = Stream()
        chs, info = add_step(st, t0 + 3, QK_OPEN, {0: 'zero', 1: 'zero', 2: 'acc', 3: 'acc'}, STD, top=topx(t0 + 3))
        best_sched(st, chs, nextpre=TOP, verbose=name + "D"); e.stream(st)
    def plain(t, name, qk=QK_OPEN, extra=None):
        st = Stream()
        chs, info = add_step(st, t, qk, PV_ACC, STD, top=topx(t))
        if extra: chs.append(extra)
        best_sched(st, chs, nextpre=TOP, verbose=name); e.stream(st)
    seed(0); trans(0, "sp3")
    k(f"s_sub_u32 s{sCNT}, 7, s{sJ}\ns_mov_b32 s{sPH}, 3\ns_mov_b32 s{sTRIG}, -1\ns_branch L_k2_disp")
    k.label("L_k2_sp2")
    seed(0)
    plain(0, "sp2p0", extra=[(a_ + 6 * i, o) for i, (a_, o) in enumerate(d0_cin(4))])
    plain(1, "sp2p1", qk=QK_D0)
    trans(2, "sp2", cut="L_k2_tail2x")
    plain(6, "sp2p6"); plain(7, "sp2p7")
    k(f"s_sub_u32 s{sCNT}, 6, s{sJ}\ns_mov_b32 s{sPH}, 3\ns_branch L_k2_disp")
    k.label("L_k2_mask")
    for _, o in d0_cin(0, full=True): k(o)
    k("s_branch L_k2_maskret")
    TB = 64
    n_st = sp.n
    def tail_addr():
        return [f"s_lshl_b32 s60, s3, 14", f"v_add_u32 v{vKrd}, s60, v{vL16}", f"s_xor_b32 s60, s60, 0x8000", f"v_add_u32 v{vVrd}, s60, v{vL16}",
                f"s_lshl_b32 s60, s3, 10", f"s_add_u32 s60, s60, {XB}", f"v_add_u32 v{vT[0]}, s60, v{vL16}", f"v_xor_b32 v{vT[1]}, 0x800, v{vT[0]}"]
    def give(m, gi, at, src=None):
        return [(at, ('ds', 'gw', f"ds_write_b128 v{vKrd}, {vr(O(m,dt) if src is None else src)} offset:{gi*8192 + dt*1024}")) for dt in range(8)]
    def tail(gv, kp, name, x=False):
        sp.n = n_st
        TOPT = ["s_waitcnt vmcnt(0) lgkmcnt(0)", "s_barrier"] + sp.stamp()
        e.vm.q = []; e.ds.q = []
        st = Stream()
        if not x:
            chs, info = add_step(st, 32, {}, PV_ACC, [('p', gv[0]), ('p', gv[1]), ('p', kp[0]), ('p', kp[1])], top=TOPT, mem=False)
            c = [(0, o) for o in tail_addr()]
            c += [(0, f"v_add_f32 v{L(m)}, v{L(m)}, v{L(m)+1}") for m in range(2)]
            c += give(gv[0], 0, info[('p', gv[0])] + 3)
            c += [(info[('p', gv[1])], f"v_mov_b32 v{L(gv[0])+1}, v{L(gv[1])}"), (0, ('ds', 'gw', f"ds_write_b64 v{vT[0]}, {vr(L(gv[0]),2)}"))]
            c += give(gv[1], 1, info[('p', gv[1])] + 3)
            chs.append(c)
        else:
            chs, info = add_step(st, 32, {}, {2: 'zero', 3: 'zero'}, [('p', 2), ('p', 3)], top=TOPT, mem=False)
            c = [(0, o) for o in tail_addr()]
            c += [(0, f"v_mov_b32 v{S(0,0)+i}, 0") for i in range(4)]
            c += [(0, ('ds', 'gw', f"ds_write_b64 v{vT[0]}, {vr(S(0,0),2)}"))]
            c += give(0, 0, 0, S(0, 0)) + give(0, 1, 0, S(0, 0))
            chs.append(c); chs.append(fin(1, 0, sCS))
        best_sched(st, chs, verbose=name); e.stream(st)
        if x:
            k("s_branch L_k2_tail23b"); return
        if kp[0] == 2: k.label("L_k2_tail23b")
        k("s_waitcnt lgkmcnt(0)\ns_barrier"); e.ds.q = []
        e.ops(sp.stamp())
        e.op(('ds', 'xl', f"ds_read_b64 {vr(vT[2],2)}, v{vT[1]}"))
        for gi in range(2):
            for dt in range(8):
                if gi == 1 and dt == 6:
                    e.op(('wds', 'xl'))
                    for _, o in linv(kp[0], 0, vT[2]) + linv(kp[1], 0, vT[3]): e.ops(o if isinstance(o, list) else [o])
                e.op(('ds', f"x{kp[gi]}{dt//2}", f"ds_read_b128 {vr(TB+32*gi+4*dt)}, v{vVrd} offset:{gi*8192 + dt*1024}"))
        cks = []
        for gi in range(2):
            c, ck = fin(kp[gi], 0, sCL, add=TB + 32 * gi); e.ops(c); cks += ck
        e.ops(cks)
        k("s_branch L_k2_check")
    k.label("L_k2_tail2x"); tail(None, None, "tail2x", x=True)
    k.label("L_k2_tail23"); tail((0, 1), (2, 3), "tail23")
    k.label("L_k2_tail01"); tail((2, 3), (0, 1), "tail01")
    k.label("L_k2_check")
    k(f"v_cmp_u_f32 vcc, v{CHK}, v{CHK}\ns_or_b64 {BAD}, {BAD}, vcc")
    k(f"s_cmp_lg_u64 {BAD}, 0\ns_cselect_b32 s60, 1, 0\nv_mov_b32 v16, s60\ns_lshl_b32 s60, s3, 2\ns_add_u32 s60, s60, {XB+8192}\nv_mov_b32 v17, s60\nv_mov_b32 v18, {XB+8192}")
    k("ds_write_b32 v17, v16\ns_waitcnt lgkmcnt(0)\ns_barrier\nds_read_b128 v[24:27], v18\ns_waitcnt lgkmcnt(0)")
    k("v_or_b32 v16, v24, v25\nv_or3_b32 v16, v16, v26, v27\nv_readfirstlane_b32 s60, v16")
    k(f"s_cmp_eq_u32 s{sMODE}, 0\ns_cselect_b32 s60, s60, 0\ns_cmp_lg_u32 s60, 0\ns_cbranch_scc1 L_k2_redo")
    e.ops(sp.stamp())
    sp.dump(12, 3)
    k.label("L_k2_end"); k("s_endpgm")
    k.label("L_k2_redo")
    k(f"s_mov_b32 s{sMODE}, 1")
    for i in range(16): k(f"v_mov_b32 v{BASE(0)+i}, 0")
    k("s_waitcnt vmcnt(0)\ns_barrier\ns_branch L_k2_start")
    k.label("L_k2_maxp")
    k("s_waitcnt vmcnt(0) lgkmcnt(0)\ns_barrier")
    MX = 28; TH = 32
    k("v_lshrrev_b32 v16, 4, v0\nv_lshlrev_b32 v16, 2, v16\nv_and_b32 v17, 15, v0\nv_sub_u32 v16, v17, v16")
    k(f"v_add_u32 v{TH}, s{sQ0}, v16")
    for m in range(1, 4): k(f"v_add_u32 v{TH+m}, {16*m}, v{TH}")
    for m in range(4): k(f"v_mov_b32 v{MX+m}, v{vNEG}")
    k(f"s_lshl_b32 s60, s{sH}, 19\ns_add_u32 s60, s60, {WS_KF}\ns_mov_b32 s61, s{sNU}")
    k.label("L_k2_maxl")
    k("s_add_u32 s62, s60, 4096")
    for kt in range(2):
        for s in range(4):
            k(f"buffer_load_dwordx4 {ar(aK(0,kt,s))}, v{vL16}, s[12:15], s{60 if kt == 0 else 62} offen offset:{s*1024}")
    k("s_waitcnt vmcnt(0)")
    for m in range(4):
        for s in range(4):
            for kt in range(2):
                d = S(m, kt); k(f"{MFMA} {vr(d)}, {ar(aK(0,kt,s))}, {ar(aQ(m,s))}, {vr(d) if s else 0}")
    for m in range(4):
        for kt in range(2):
            for r in range(4):
                x = S(m, kt) + r
                k(f"v_cmp_gt_i32 vcc, {16*kt+r}, v{TH+m}\nv_cndmask_b32 v{x}, v{x}, v{vNEG}, vcc\nv_max_f32 v{MX+m}, v{MX+m}, v{x}")
        k(f"v_subrev_u32 v{TH+m}, 32, v{TH+m}")
    k("s_add_u32 s60, s60, 8192\ns_sub_u32 s61, s61, 1\ns_cmp_lg_u32 s61, 0\ns_cbranch_scc1 L_k2_maxl")
    for m in range(4):
        red_swap(k, MX + m, 16, 16, "v_max_f32"); red_swap(k, MX + m, 16, 32, "v_max_f32")
        k(f"v_sub_f32 v{MX+m}, 0, v{MX+m}")
        for r in range(4): k(f"v_mov_b32 v{BASE(m)+r}, v{MX+m}")
    k(f"s_lshl_b32 s60, s3, 10\nv_add_u32 v16, s60, v{vL16}\nv_and_b32 v17, 0x7ff, v16")
    k(f"ds_write_b128 v16, {vr(MX)}\ns_waitcnt lgkmcnt(0)\ns_barrier\nds_read_b128 {vr(P(0,0))}, v17\ns_waitcnt lgkmcnt(0)\ns_barrier")
    k(f"s_mov_b32 s{sMODE}, 2\ns_branch L_k2_start")
    return k, 512, 102, 256
```

```python
from common import *

def gen_gemm(kind, prof=False, stflag='sc1', slot=2, NPRE=3, TAILK=4, PD=3, rate=10):
    name = {'o': 'k3', 'f1': 'k5', 'f2': 'k6'}[kind]
    k = K(name + "_kernel"); e = Em(k); sp = Stamps(k, prof, slot)
    NK = 16 if kind == 'o' else 18
    ldw = 9216 if kind == 'f1' else 1152
    wrows = {'o': 4096, 'f1': 576, 'f2': 4608}[kind]
    karg = {'o': 40, 'f1': 56, 'f2': 64}[kind]
    astr = {'o': 131072, 'f1': 18432, 'f2': 147456}[kind]
    abase = {'o': WS_CTX, 'f1': WS_HN, 'f2': WS_H1}[kind]
    ostr = 147456 if kind == 'f1' else 18432
    obase = {'o': WS_P1, 'f1': WS_H1, 'f2': WS_P2}[kind]
    SL = 9216
    vA = [1, 2, 3, 4]; vAH = [5, 6, 7, 8]; vO = [9, 10, 11, 12]; vOH = [13, 14, 15, 80]
    vDM = [81, 82]; vDX = 83
    TRS = [84, 93, 102]
    F = 8
    WF = lambda f: 16 + 4 * (f % F)
    acc = lambda t, m: 112 + 16 * t + 4 * m
    def afr(ks, m): return f"a[{16*ks+4*m}:{16*ks+4*m+3}]" if ks < 16 else f"v[{48+16*(ks-16)+4*m}:{48+16*(ks-16)+4*m+3}]"
    def afh(ks, m, hf): b = 48 + 16 * (ks - 16) + 4 * m + 2 * hf; return f"v[{b}:{b+1}]"
    if NK == 16:
        slot_of = lambda ks: ks; sets = [0, 7, 9]
    else:
        slot_of = lambda ks: 16 if ks in (0, 17) else ks - 1; sets = [0, 3, 10]
    def set_of(sl):
        for i in (2, 0, 1):
            if sets[i] <= sl < sets[i] + 7: return i
    sWM, sWX, sLM, sAO, sOO, sOH, sAH, sT, sT2, sT3 = 20, 21, 22, 23, 24, 25, 26, 27, 28, 29
    vr = lambda b, n=4: f"v[{b}:{b+n-1}]"

    k(f"s_cmp_ge_u32 s2, 256\ns_cbranch_scc1 L_{name}_end")
    sp.init(); e.ops(sp.stamp())
    k(f"s_load_dwordx2 s[4:5], s[0:1], {karg}")
    k("s_load_dwordx2 s[6:7], s[0:1], 88")
    k("v_lshrrev_b32 v15, 6, v0\nv_and_b32 v0, 63, v0\nv_readfirstlane_b32 s3, v15")
    k("s_and_b32 s40, s2, 7\ns_lshr_b32 s41, s2, 3\ns_and_b32 s42, s41, 3\ns_lshr_b32 s43, s41, 2")
    k(f"v_lshrrev_b32 v16, 4, v0\nv_and_b32 v17, 15, v0\nv_lshlrev_b32 v18, 1, v16\nv_xor_b32 v17, v17, v18")
    k(f"v_mul_u32_u24 v18, {ldw}, v16\nv_lshl_add_u32 v{vDM[0]}, v17, 4, v18")
    k(f"v_xor_b32 v17, 8, v17\nv_lshl_add_u32 v{vDM[1]}, v17, 4, v18\nv_add_u32 v{vDM[1]}, {4*ldw-1024}, v{vDM[1]}")
    k(f"v_lshrrev_b32 v17, 1, v0\nv_mul_u32_u24 v17, {ldw}, v17\nv_and_b32 v18, 1, v0\nv_lshl_add_u32 v{vDX}, v18, 4, v17")
    k(f"v_lshlrev_b32 v{vA[0]}, 4, v0")
    for m in range(1, 4): k(f"v_add_u32 v{vA[m]}, {m*astr}, v{vA[0]}")
    if kind == 'f1':
        k("s_lshl_b32 s44, s40, 2\ns_add_u32 s44, s44, s42")
        k(f"s_lshl_b32 s{sWM}, s44, 8\ns_lshl_b32 s{sWX}, s44, 5\ns_add_u32 s{sWX}, s{sWX}, 8192")
        k(f"s_mov_b32 s45, 0")
    else:
        k(f"s_mul_i32 s45, s40, {512*ldw}")
        k(f"s_lshl_b32 s{sWM}, s42, 8\ns_add_u32 s{sWM}, s{sWM}, s45\ns_lshl_b32 s{sWX}, s42, 5\ns_add_u32 s{sWX}, s{sWX}, 1024\ns_add_u32 s{sWX}, s{sWX}, s45")
    k(f"s_mul_i32 s46, s3, {8*ldw}\ns_add_u32 s{sWM}, s{sWM}, s46")
    k(f"s_mul_i32 s46, s3, {32*ldw}\ns_add_u32 s{sWX}, s{sWX}, s46")
    k(f"s_lshl_b32 s{sLM}, s3, 11")
    k(f"s_lshl_b32 s47, s43, 4\ns_lshl_b32 s46, s3, 2\ns_add_u32 s47, s47, s46")
    k(f"s_mul_i32 s{sAO}, s47, {astr}\ns_add_u32 s{sAO}, s{sAO}, {abase}")
    if kind != 'f1': k(f"s_add_u32 s{sAH}, s{sAO}, 131072\ns_lshl_b32 s46, s40, 14\ns_add_u32 s{sAO}, s{sAO}, s46\ns_lshl_b32 s46, s40, 11\ns_add_u32 s{sAH}, s{sAH}, s46")
    k(f"s_mov_b32 s10, {wrows*ldw}\ns_mov_b32 s11, 0x20000\ns_mov_b32 s14, {WS_SIZE}\ns_mov_b32 s15, 0x20000")
    k("s_waitcnt lgkmcnt(0)")
    k("s_mov_b32 s8, s4\ns_mov_b32 s9, s5\ns_mov_b32 s12, s6\ns_mov_b32 s13, s7")
    def wrow(ks):
        if kind == 'f2' and ks >= 16: return None
        return ks * 32 * ldw
    if kind == 'f2':
        k(f"s_mul_i32 s48, s40, {448*ldw}\ns_sub_u32 s48, {4096*ldw}, s48\ns_add_u32 s49, s48, s{sWX}\ns_add_u32 s48, s48, s{sWM}")
    def loads(ks):
        o = []
        if wrow(ks) is not None: o.append(f"s_add_u32 s{sT}, s{sWM}, {wrow(ks)}")
        else: o.append(f"s_add_u32 s{sT}, s48, {(ks-16)*32*ldw}")
        o.append(f"s_add_u32 m0, s{sLM}, {slot_of(ks)*SL}")
        o += [('vm', f"W{ks}", f"buffer_load_dwordx4 v{vDM[q]}, s[8:11], s{sT} offen offset:{q*1024} lds") for q in range(2)]
        if ks % 4 == 0:
            if ks + 3 < NK:
                o.append(f"s_add_u32 s{sT2}, s{sWX}, {wrow(ks)}")
                if NK == 18 and ks == 0: o += [f"s_mov_b32 m0, s50"]
                else: o += [f"s_add_u32 m0, s51, {slot_of(ks)*SL}"]
            else:
                o.append(f"s_mov_b32 s{sT2}, s52")
                o.append(f"s_mov_b32 m0, s53")
            o.append(('vm', f"W{ks}", f"buffer_load_dwordx4 v{vDX}, s[8:11], s{sT2} offen lds"))
        if kind == 'f2' and ks >= 16:
            for m in range(4):
                for hf in range(2):
                    o.append(('vm', f"A{ks}", f"buffer_load_dwordx2 {afh(ks,m,hf)}, v{vAH[m]}, s[12:15], s{sAH} offen offset:{((ks-16)*2+hf)*512}"))
        else:
            if ks % 4 == 0 and ks: o.append(f"s_add_u32 s{sAO}, s{sAO}, 4096")
            for m in range(4):
                o.append(('vm', f"A{ks}", f"buffer_load_dwordx4 {afr(ks,m)}, v{vA[m]}, s[12:15], s{sAO} offen offset:{(ks%4)*1024}"))
        return o
    k(f"s_mul_i32 s51, s3, {SL}\ns_add_u32 s51, s51, 8192")
    if NK == 18:
        k(f"s_sub_u32 s50, s51, {SL}\ns_cmp_eq_u32 s3, 0\ns_cselect_b32 s50, {16*SL+8192}, s50")
    e.ops(loads(0))
    if NK == 18:
        k(f"s_and_b32 s46, s3, 1\ns_mul_i32 s53, s46, {SL}\ns_add_u32 s53, s53, {15*SL+8192}")
        k(f"s_lshr_b32 s46, s3, 1\ns_mul_i32 s46, s46, {64*ldw}")
        if kind == 'f2': k(f"s_sub_u32 s52, s49, s46")
        else: k(f"s_sub_u32 s52, s{sWX}, s46\ns_add_u32 s52, s52, {16*32*ldw}")
    k("v_bfe_u32 v17, v0, 2, 4\nv_and_b32 v18, 3, v0\nv_and_b32 v19, 7, v17")
    k("v_lshlrev_b32 v20, 8, v17\nv_lshl_add_u32 v20, v18, 3, v20\nv_lshl_add_u32 v20, v19, 5, v20")
    k("v_lshlrev_b32 v21, 5, v17\nv_lshl_add_u32 v21, v18, 3, v21")
    o0 = set_of(slot_of(0))
    order = [o0] + [i for i in range(3) if i != o0]
    def mkset(i):
        for t in range(8): k(f"v_xor_b32 v22, {t<<5}, v20\nv_add_u32 v{TRS[i]+t}, {sets[i]*SL}, v22")
        k(f"v_add_u32 v{TRS[i]+8}, {sets[i]*SL+8192}, v21")
    mkset(order[0])
    e.ops(loads(1))
    mkset(order[1]); mkset(order[2])
    for ks in range(2, NPRE): e.ops(loads(ks))
    k(f"v_lshlrev_b32 v{vOH[0]}, 3, v0")
    for m in range(4):
        k(f"v_add_u32 v{vO[m]}, {m*ostr}, v{vA[0]}")
        if m: k(f"v_add_u32 v{vOH[m]}, {m*ostr}, v{vOH[0]}")
        if kind == 'f2': k(f"v_add_u32 v{vAH[m]}, {m*astr}, v{vOH[0]}")
    k(f"s_mul_i32 s{sOO}, s47, {ostr}\ns_add_u32 s{sOO}, s{sOO}, {obase}")
    if kind == 'f1':
        k(f"s_lshl_b32 s46, s44, 9\ns_add_u32 s{sOH}, s{sOO}, s46\ns_add_u32 s{sOH}, s{sOH}, 131072\ns_lshl_b32 s46, s44, 12\ns_add_u32 s{sOO}, s{sOO}, s46")
    else:
        k(f"s_mul_i32 s46, s40, {128*18432}\ns_add_u32 s{sOO}, s{sOO}, s46")
        k(f"s_lshl_b32 s46, s42, 9\ns_add_u32 s{sOH}, s{sOO}, s46\ns_add_u32 s{sOH}, s{sOH}, 16384\ns_lshl_b32 s46, s42, 12\ns_add_u32 s{sOO}, s{sOO}, s46")
    e.ops(sp.stamp())
    seq = [(ks, t) for ks in range(NK - TAILK) for t in range(9)]
    for grp in ((0, 1), (2, 3), (4, 5), (6, 7), (8,)):
        seq += [(ks, t) for ks in range(NK - TAILK, NK) for t in grp]
    NS = len(seq)
    def wread(gf):
        ks, t = seq[gf]; sl = slot_of(ks); si = set_of(sl); off = (sl - sets[si]) * SL; b = WF(gf)
        return [('ds', f"w{gf}", f"ds_read_b64_tr_b16 v[{b+2*rd}:{b+2*rd+1}], v{TRS[si]+t} offset:{off + rd*(512 if t == 8 else 4096)}") for rd in range(2)]
    firstrd = {}
    for gf, (ks, t) in enumerate(seq): firstrd.setdefault(ks, gf)
    syncs = {}
    ks = 0
    plan = [1, 1, 2] + [2] * 20
    i = 0
    while ks < NK:
        n = plan[i]; i += 1
        if ks + n > NK - TAILK or ks >= NK - TAILK: n = NK - ks if ks >= NK - TAILK else NK - TAILK - ks
        syncs[ks] = ks + n - 1; ks += n
    e.op(('wvm', f"W{syncs[0]}")); k("s_barrier")
    for gf in range(PD): e.ops(wread(gf))
    e.op(('wboth', 'A0', 'w0'))
    e.ops(sp.stamp())
    st = Stream(); done = {}; aw = set([0])
    for gf, (ks, t) in enumerate(seq):
        for m in range(4):
            d = acc(t, m)
            i = st.add(f"{MFMA} {vr(d)}, {vr(WF(gf))}, {afr(ks,m)}, {vr(d) if ks else 0}")
            done[(t, m)] = i
            if m == 0 and gf + PD < NS:
                for o in wread(gf + PD): st.post(i, o)
            if m == 3 and gf + 1 < NS:
                g1 = gf + 1; nx = g1 + PD
                nk = seq[g1][0]
                if nx < NS and firstrd[seq[nx][0]] == nx and seq[nx][0] in syncs:
                    assert nk in aw
                    w = [('wboth', f"W{syncs[seq[nx][0]]}", f"w{g1}"), "s_barrier"]
                elif nk not in aw:
                    aw.add(nk); w = [('wboth', f"A{nk}", f"w{g1}")]
                else: w = [('wds', f"w{g1}")]
                for o in w: st.post(i, o)
    ch = []
    pos = 0
    for ks in range(NPRE, NK):
        l = loads(ks)
        ear = pos
        if NK == 18 and ks >= 16: ear = max(ear, firstrd[2] * 4)
        for i, o in enumerate(l): ch.append((ear + (i * 36 * 6) // (len(l) * rate), o))
        pos = ear + 36 * 6 // rate
    ep = []
    def relu(z): return [f"v_pk_max_i16 v{z}, v{z}, 0"] if kind == 'f1' else []
    for p in range(4):
        for m in range(4):
            a_, b_ = acc(2 * p, m), acc(2 * p + 1, m); at = done[(2 * p + 1, m)] + 3
            ops = [f"v_cvt_pk_bf16_f32 v{a_}, v{a_}, v{a_+1}", f"v_cvt_pk_bf16_f32 v{a_+1}, v{a_+2}, v{a_+3}",
                   f"v_cvt_pk_bf16_f32 v{a_+2}, v{b_}, v{b_+1}", f"v_cvt_pk_bf16_f32 v{a_+3}, v{b_+2}, v{b_+3}"]
            for z in range(4): ops += relu(a_ + z)
            ops.append(('vm', 'st', f"buffer_store_dwordx4 {vr(a_)}, v{vO[m]}, s[12:15], s{sOO} offen offset:{p*1024} {stflag}"))
            ep += [(at, o) for o in ops]
    tail = []
    for m in range(4):
        a_ = acc(8, m)
        tail += [f"v_cvt_pk_bf16_f32 v{a_}, v{a_}, v{a_+1}", f"v_cvt_pk_bf16_f32 v{a_+1}, v{a_+2}, v{a_+3}"] + relu(a_) + relu(a_ + 1)
        tail.append(('vm', 'st', f"buffer_store_dwordx2 {vr(a_,2)}, v{vOH[m]}, s[12:15], s{sOH} offen {stflag}"))
    T0 = (NK - TAILK) * 36
    left = gsched(st, [ch], 0, hi=T0); assert left == 0, left
    best_sched(st, [ep], lo=T0, verbose=name + " tail")
    print(name, "cost", stcost(st))
    for z in sp.stamp(): st.pre(4 * 36, z)
    for z in sp.stamp(): st.pre(8 * 36, z)
    for z in sp.stamp(): st.pre(T0, z)
    e.stream(st)
    e.ops(sp.stamp())
    e.ops(tail)
    sp.dump(12, 3)
    k.label(f"L_{name}_end"); k("s_endpgm")
    return k, 512, 102, 256
```

```python
from common import *

def gen_red(kind, prof=False, slot=3, stflag='sc1', NS=8):
    name = 'k4' if kind == 'ln' else 'k7'
    k = K(name + "_kernel"); e = Em(k); sp = Stamps(k, prof, slot)
    pbase = WS_P1 if kind == 'ln' else WS_P2
    PS = 128 * 18432
    D = lambda s: 16 + 4 * s
    X = 48
    Fv = list(range(52, 60))
    k(f"s_cmp_ge_u32 s2, 256\ns_cbranch_scc1 L_{name}_end")
    sp.init(); e.ops(sp.stamp())
    k(f"s_load_dwordx2 s[4:5], s[0:1], {0 if kind == 'ln' else 72}")
    k("s_load_dwordx2 s[6:7], s[0:1], 88")
    k("v_lshrrev_b32 v15, 6, v0\nv_and_b32 v0, 63, v0\nv_readfirstlane_b32 s3, v15")
    k("v_and_b32 v1, 7, v0\nv_bfe_u32 v2, v0, 3, 1\nv_lshrrev_b32 v3, 4, v0")
    k("v_lshlrev_b32 v4, 4, v1\nv_lshl_add_u32 v4, v3, 8, v4\nv_lshl_add_u32 v4, v2, 10, v4")
    k("v_lshlrev_b32 v5, 3, v1\nv_lshl_add_u32 v5, v3, 7, v5\nv_lshl_add_u32 v5, v2, 10, v5")
    k("v_mul_u32_u24 v6, 1152, v1\nv_lshl_add_u32 v6, v2, 6, v6\nv_and_b32 v7, 1, v3\nv_lshl_add_u32 v6, v7, 5, v6\nv_lshrrev_b32 v7, 1, v3\nv_lshl_add_u32 v6, v7, 4, v6")
    k("s_lshr_b32 s20, s2, 1\ns_mul_i32 s20, s20, 18432\ns_and_b32 s21, s2, 1\ns_lshl_b32 s22, s21, 7\ns_lshl_b32 s23, s3, 11")
    k("s_add_u32 s24, s20, s22\ns_add_u32 s24, s24, s23")
    k(f"s_lshl_b32 s22, s21, 6\ns_add_u32 s25, s20, s22\ns_add_u32 s25, s25, {16384 + pbase}")
    k(f"s_add_u32 s26, s24, {pbase}")
    k(f"s_mul_i32 s27, s2, {8*1152}\ns_lshl_b32 s22, s3, 7\ns_add_u32 s27, s27, s22")
    k(f"s_add_u32 s28, s24, {WS_H}\ns_add_u32 s29, s24, {WS_HN}")
    k(f"s_mov_b32 s10, {2048*1152}\ns_mov_b32 s11, 0x20000\ns_mov_b32 s14, {WS_SIZE}\ns_mov_b32 s15, 0x20000")
    k("s_cmp_eq_u32 s3, 8")
    k("s_waitcnt lgkmcnt(0)")
    k("s_mov_b32 s8, s4\ns_mov_b32 s9, s5\ns_mov_b32 s12, s6\ns_mov_b32 s13, s7")
    k(f"s_cbranch_scc1 L_{name}_half")
    for s in range(NS):
        k(f"buffer_load_dwordx4 v[{D(s)}:{D(s)+3}], v4, s[12:15], s26 offen")
        if s + 1 < NS: k(f"s_add_u32 s26, s26, {PS}")
    k(f"s_branch L_{name}_join")
    k.label(f"L_{name}_half")
    for s in range(NS):
        k(f"buffer_load_dwordx2 v[{D(s)}:{D(s)+1}], v5, s[12:15], s25 offen")
        k(f"buffer_load_dwordx2 v[{D(s)+2}:{D(s)+3}], v5, s[12:15], s25 offen offset:512")
        if s + 1 < NS: k(f"s_add_u32 s25, s25, {PS}")
    k.label(f"L_{name}_join")
    if kind == 'ln': k(f"buffer_load_dwordx4 v[{X}:{X+3}], v6, s[8:11], s27 offen")
    else: k(f"buffer_load_dwordx4 v[{X}:{X+3}], v4, s[12:15], s28 offen")
    e.ops(sp.stamp())
    k("s_waitcnt vmcnt(0)")
    e.ops(sp.stamp())
    T = list(range(60, 76))
    for i in range(4):
        k(f"v_lshlrev_b32 v{Fv[2*i]}, 16, v{D(0)+i}\nv_and_b32 v{Fv[2*i+1]}, 0xffff0000, v{D(0)+i}")
    for s in range(1, NS):
        for i in range(4):
            k(f"v_lshlrev_b32 v{T[2*i]}, 16, v{D(s)+i}\nv_and_b32 v{T[2*i+1]}, 0xffff0000, v{D(s)+i}")
        for i in range(4):
            k(f"v_pk_add_f32 v[{Fv[2*i]}:{Fv[2*i+1]}], v[{Fv[2*i]}:{Fv[2*i+1]}], v[{T[2*i]}:{T[2*i+1]}]")
    for i in range(4): k(f"v_cvt_pk_bf16_f32 v{T[i]}, v{Fv[2*i]}, v{Fv[2*i+1]}")
    if kind == 'ln':
        k(f"v_permlane16_swap_b32 v{X}, v{X+2}\nv_permlane16_swap_b32 v{X+1}, v{X+3}")
    for i in range(4):
        k(f"v_lshlrev_b32 v{Fv[2*i]}, 16, v{T[i]}\nv_and_b32 v{Fv[2*i+1]}, 0xffff0000, v{T[i]}")
        k(f"v_lshlrev_b32 v{T[4+2*i]}, 16, v{X+i}\nv_and_b32 v{T[5+2*i]}, 0xffff0000, v{X+i}")
    for i in range(4):
        k(f"v_pk_add_f32 v[{Fv[2*i]}:{Fv[2*i+1]}], v[{Fv[2*i]}:{Fv[2*i+1]}], v[{T[4+2*i]}:{T[5+2*i]}]")
    for i in range(4): k(f"v_cvt_pk_bf16_f32 v{X+i}, v{Fv[2*i]}, v{Fv[2*i+1]}")
    if kind == 'out':
        k(f"v_permlane16_swap_b32 v{X}, v{X+2}\nv_permlane16_swap_b32 v{X+1}, v{X+3}")
        k(f"buffer_store_dwordx4 v[{X}:{X+3}], v6, s[8:11], s27 offen {stflag}")
    else:
        k(f"buffer_store_dwordx4 v[{X}:{X+3}], v4, s[12:15], s28 offen {stflag}")
        for i in range(4):
            k(f"v_lshlrev_b32 v{Fv[2*i]}, 16, v{X+i}\nv_and_b32 v{Fv[2*i+1]}, 0xffff0000, v{X+i}")
        def red(x, t):
            k(f"v_add_f32_dpp v{x}, v{x}, v{x} row_ror:8 row_mask:0xf bank_mask:0xf")
            red_swap(k, x, t, 16); red_swap(k, x, t, 32)
        s1, s2, t0, m, t1 = 60, 61, 62, 63, 64
        k(f"v_add_f32 v{s1}, v{Fv[0]}, v{Fv[1]}\nv_add_f32 v{s2}, v{Fv[2]}, v{Fv[3]}\nv_add_f32 v{t0}, v{Fv[4]}, v{Fv[5]}\nv_add_f32 v{t1}, v{Fv[6]}, v{Fv[7]}")
        k(f"v_add_f32 v{s1}, v{s1}, v{s2}\nv_add_f32 v{t0}, v{t0}, v{t1}\nv_add_f32 v{s1}, v{s1}, v{t0}")
        red(s1, t0)
        k(f"v_mul_f32 v{s1}, {1/64!r}, v{s1}")
        for i in range(8): k(f"v_sub_f32 v{66+i}, v{Fv[i]}, v{s1}")
        k(f"v_mul_f32 v{s2}, v66, v66\nv_mul_f32 v{t1}, v67, v67")
        for i in range(2, 8, 2): k(f"v_fmac_f32 v{s2}, v{66+i}, v{66+i}\nv_fmac_f32 v{t1}, v{67+i}, v{67+i}")
        k(f"v_add_f32 v{s2}, v{s2}, v{t1}")
        red(s2, t0)
        k(f"v_lshlrev_b32 v{t0}, 7, v1\ns_lshl_b32 s22, s3, 3\nv_add_u32 v{t1}, s22, v{t0}")
        k(f"ds_write_b64 v{t1}, v[{s1}:{s2}]")
        k("s_waitcnt lgkmcnt(0)\ns_barrier")
        R = 16
        for i in range(4): k(f"ds_read_b128 v[{R+4*i}:{R+4*i+3}], v{t0} offset:{16*i}")
        k(f"ds_read_b64 v[{R+16}:{R+17}], v{t0} offset:64")
        k("s_waitcnt lgkmcnt(0)")
        mu = lambda i: R + 2 * i; m2 = lambda i: R + 2 * i + 1
        k(f"v_add_f32 v{s1}, v{mu(0)}, v{mu(1)}\nv_add_f32 v{s2}, v{m2(0)}, v{m2(1)}")
        for i in range(2, 9): k(f"v_add_f32 v{s1}, v{s1}, v{mu(i)}\nv_add_f32 v{s2}, v{s2}, v{m2(i)}")
        k(f"v_mul_f32 v{s1}, {1/9!r}, v{s1}")
        for i in range(9): k(f"v_sub_f32 v{mu(i)}, v{mu(i)}, v{s1}")
        k(f"v_mul_f32 v{t1}, v{mu(0)}, v{mu(0)}")
        for i in range(1, 9): k(f"v_fmac_f32 v{t1}, v{mu(i)}, v{mu(i)}")
        k(f"v_fmac_f32 v{s2}, 64.0, v{t1}") if False else k(f"v_mov_b32 v{t0}, 0x42800000\nv_fmac_f32 v{s2}, v{t0}, v{t1}")
        k(f"v_mul_f32 v{s2}, {1/576!r}, v{s2}")
        rbf(k, m, s1)
        rbf(k, s2, s2)
        k(f"v_add_f32 v{s2}, 0x3727c5ac, v{s2}")
        rbf(k, s2, s2)
        k(f"v_sqrt_f32 v{s2}, v{s2}")
        for f in Fv: k(f"v_sub_f32 v{f}, v{f}, v{m}")
        rbf(k, s2, s2)
        k(f"v_rcp_f32 v{s2}, v{s2}")
        for i in range(4): k(f"v_cvt_pk_bf16_f32 v{Fv[2*i+1]}, v{Fv[2*i]}, v{Fv[2*i+1]}")
        for i in range(4): k(f"v_lshlrev_b32 v{Fv[2*i]}, 16, v{Fv[2*i+1]}\nv_and_b32 v{Fv[2*i+1]}, 0xffff0000, v{Fv[2*i+1]}")
        for f in Fv: k(f"v_mul_f32 v{f}, v{f}, v{s2}")
        for i in range(4): k(f"v_cvt_pk_bf16_f32 v{Fv[i]}, v{Fv[2*i]}, v{Fv[2*i+1]}")
        k(f"buffer_store_dwordx4 v[{Fv[0]}:{Fv[3]}], v4, s[12:15], s29 offen {stflag}")
    e.ops(sp.stamp())
    sp.dump(12, 3, nwaves=9)
    k.label(f"L_{name}_end"); k("s_endpgm")
    return k, 80, 102, 80
```

```python
import sys
from common import *
from k1 import gen_k1
from k2 import gen_k2
from k3 import gen_gemm
from k4 import gen_red
HDR = open("sequential_preLN__compressed_kv_cla__dense_activation_relu__prompt.s.ref").read().split("\n")[:15]
def build(out, prof=False, **kw):
    ks = []; ls = []
    g = kw.get('g', {})
    ks.append(gen_k1(prof=prof, stflag=kw.get("stflag","sc1"), x=kw.get('x',''))); ls.append(("k1_kernel", 256, 256, 163840))
    ks.append(gen_k2(prof=prof, force_mode=kw.get('mode',0))); ls.append(("k2_kernel", 256, 256, 163840))
    ks.append(gen_gemm('o', prof=prof, slot=2, **g)); ls.append(("k3_kernel", 256, 256, 163840))
    ks.append(gen_red('ln', prof=prof, slot=3)); ls.append(("k4_kernel", 256, 576, 1024))
    ks.append(gen_gemm('f1', prof=prof, slot=4, **g)); ls.append(("k5_kernel", 256, 256, 163840))
    ks.append(gen_gemm('f2', prof=prof, slot=5, **g)); ls.append(("k6_kernel", 256, 256, 163840))
    ks.append(gen_red('out', prof=prof, slot=6)); ls.append(("k7_kernel", 256, 576, 0))
    txt = build_file(HDR, ls, ks)
    open(out, "w").write(txt); print(len(txt), "bytes")
if __name__ == "__main__":
    import json
    kw = json.loads(sys.argv[2]) if len(sys.argv) > 2 else {}
    build(sys.argv[1] if len(sys.argv) > 1 else "main.s", **kw)
```
